```python
import torch

def _softmax(x, axis=-1):
    return torch.softmax(x, dim=axis)

def _gelu(x):
    return torch.nn.functional.gelu(x, approximate='tanh')

def _silu(x):
    return torch.nn.functional.silu(x)

def _sigmoid(x):
    return torch.sigmoid(x)

def _layernorm(x, axis=-1, eps=1e-05):
    m = x.mean(dim=axis, keepdim=True)
    v = x.var(dim=axis, keepdim=True, unbiased=False)
    return (x - m) / torch.sqrt(v + eps)

def _scatter_add(tgt, idx, src, axis=0):
    return tgt.clone().index_add_(axis, idx, src)

def _segment_sum(src, seg, n):
    out = torch.zeros((n,) + src.shape[1:], dtype=src.dtype)
    return out.index_add_(0, seg, src)

def _pad(x, pw):
    flat = tuple((v for pair in reversed(pw) for v in pair))
    return torch.nn.functional.pad(x, flat)
kernel_name = 'gated_mix__memory_aug_recurrent_mem_tr__memory_aug_recurrent_mem_tr__prompt'

def setup_inputs():

    _w = lambda a: (lambda t: t.to(torch.bfloat16) if t.is_floating_point() else t)(torch.as_tensor(a))

    def _A_setup():
        B, S, Dm = (1, 2048, 576)
        H, Dh = (32, 128)
        M, seg = (8, 32)
        seg = min(seg, S)
        S = S // seg * seg
        return {'x': _w((lambda *s: torch.randn(*s, dtype=torch.bfloat16) * 0.05)(B, S, Dm)), 'mem0': _w((lambda *s: torch.randn(*s, dtype=torch.bfloat16) * 0.4)(B, M, Dm)), 'Wq': _w((lambda *s: torch.randn(*s, dtype=torch.bfloat16) * 6.4)(Dm, H, Dh) * Dm ** (-0.5)), 'Wk': _w((lambda *s: torch.randn(*s, dtype=torch.bfloat16) * 6.4)(Dm, H, Dh) * Dm ** (-0.5)), 'Wv': _w((lambda *s: torch.randn(*s, dtype=torch.bfloat16) * 0.4)(Dm, H, Dh) * Dm ** (-0.5)), 'Wo': _w((lambda *s: torch.randn(*s, dtype=torch.bfloat16) * 0.4)(H, Dh, Dm) * (H * Dh) ** (-0.5)), 'seg_len': seg}
    _A_in = _A_setup()

    def _B_setup():
        B, S, Dm = (1, 2048, 576)
        H, Dh = (32, 128)
        M, seg = (8, 32)
        seg = min(seg, S)
        S = S // seg * seg
        return {'x': _w((lambda *s: torch.randn(*s, dtype=torch.bfloat16) * 0.05)(B, S, Dm)), 'mem0': _w((lambda *s: torch.randn(*s, dtype=torch.bfloat16) * 0.4)(B, M, Dm)), 'Wq': _w((lambda *s: torch.randn(*s, dtype=torch.bfloat16) * 6.4)(Dm, H, Dh) * Dm ** (-0.5)), 'Wk': _w((lambda *s: torch.randn(*s, dtype=torch.bfloat16) * 6.4)(Dm, H, Dh) * Dm ** (-0.5)), 'Wv': _w((lambda *s: torch.randn(*s, dtype=torch.bfloat16) * 0.4)(Dm, H, Dh) * Dm ** (-0.5)), 'Wo': _w((lambda *s: torch.randn(*s, dtype=torch.bfloat16) * 0.4)(H, Dh, Dm) * (H * Dh) ** (-0.5)), 'seg_len': seg}
    _B_in = _B_setup()
    return {'A_x': _A_in['x'], 'A_mem0': _A_in['mem0'], 'A_Wq': _A_in['Wq'], 'A_Wk': _A_in['Wk'], 'A_Wv': _A_in['Wv'], 'A_Wo': _A_in['Wo'], 'A_seg_len': _A_in['seg_len'], 'B_x': _B_in['x'], 'B_mem0': _B_in['mem0'], 'B_Wq': _B_in['Wq'], 'B_Wk': _B_in['Wk'], 'B_Wv': _B_in['Wv'], 'B_Wo': _B_in['Wo'], 'B_seg_len': _B_in['seg_len'], 'gate_w': _w((lambda *s: torch.randn(*s, dtype=torch.bfloat16) * 0.05)(576) * 16.0)}

def reference(A_x, A_mem0, A_Wq, A_Wk, A_Wv, A_Wo, A_seg_len, B_x, B_mem0, B_Wq, B_Wk, B_Wv, B_Wo, B_seg_len, gate_w):

    def _A_ref(x, mem0, Wq, Wk, Wv, Wo, seg_len):
        B, S, Dm = x.shape
        H, Dh = (Wq.shape[1], Wq.shape[2])
        M = mem0.shape[1]
        scale = Dh ** (-0.5)
        n_seg = S // seg_len
        L = M + seg_len
        idx = torch.arange(L)
        mask = (idx[:, None] < M) | (idx[:, None] >= idx[None, :])
        mem = mem0
        outs = []
        for s in range(n_seg):
            xs = x[:, s * seg_len:(s + 1) * seg_len, :].clone()
            h = torch.concatenate([mem, xs], axis=1)
            q = torch.einsum('btd,dhe->bhte', h, Wq)
            k = torch.einsum('btd,dhe->bhte', h, Wk)
            v = torch.einsum('btd,dhe->bhte', h, Wv)
            scores = torch.einsum('bhqe,bhke->bhqk', q, k) * scale
            scores = torch.where(mask[None, None], scores, -1000000000.0)
            p = _softmax(scores, axis=-1)
            o = torch.einsum('bhqk,bhke->bhqe', p, v)
            o = torch.einsum('bhte,hed->btd', o, Wo)
            mem = o[:, :M, :].clone()
            outs.append(o[:, M:, :])
        return torch.concatenate(outs, axis=1)

    def _B_ref(x, mem0, Wq, Wk, Wv, Wo, seg_len):
        B, S, Dm = x.shape
        H, Dh = (Wq.shape[1], Wq.shape[2])
        M = mem0.shape[1]
        scale = Dh ** (-0.5)
        n_seg = S // seg_len
        L = M + seg_len
        idx = torch.arange(L)
        mask = (idx[:, None] < M) | (idx[:, None] >= idx[None, :])
        mem = mem0
        outs = []
        for s in range(n_seg):
            xs = x[:, s * seg_len:(s + 1) * seg_len, :].clone()
            h = torch.concatenate([mem, xs], axis=1)
            q = torch.einsum('btd,dhe->bhte', h, Wq)
            k = torch.einsum('btd,dhe->bhte', h, Wk)
            v = torch.einsum('btd,dhe->bhte', h, Wv)
            scores = torch.einsum('bhqe,bhke->bhqk', q, k) * scale
            scores = torch.where(mask[None, None], scores, -1000000000.0)
            p = _softmax(scores, axis=-1)
            o = torch.einsum('bhqk,bhke->bhqe', p, v)
            o = torch.einsum('bhte,hed->btd', o, Wo)
            mem = o[:, :M, :].clone()
            outs.append(o[:, M:, :])
        return torch.concatenate(outs, axis=1)
    x = A_x
    g = _sigmoid((x * gate_w).sum(-1, keepdims=True))
    a = _A_ref(x, A_mem0, A_Wq, A_Wk, A_Wv, A_Wo, A_seg_len)
    b = _B_ref(x, B_mem0, B_Wq, B_Wk, B_Wv, B_Wo, B_seg_len)
    return g * a + (1 - g) * b
```

```python
import re

REG_RE = re.compile(r'^(-?)(?:abs\()?([vas])(?:(\d+)|\[(\d+):(\d+)\])\)?$')


def regs_of(op):
    op = op.strip()
    if op.startswith('-'):
        op = op[1:]
    if op.startswith('|') and op.endswith('|'):
        op = op[1:-1]
    if op == 'vcc':
        return {('s', 'vcc')}
    if op == 'exec':
        return {('s', 'exec')}
    if op == 'm0':
        return {('s', 'm0')}
    m = REG_RE.match(op)
    if not m:
        return set()
    f = m.group(2)
    if m.group(3) is not None:
        return {(f, int(m.group(3)))}
    return {(f, i) for i in range(int(m.group(4)), int(m.group(5)) + 1)}


TRANS = ('v_exp_f32', 'v_log_f32', 'v_rcp_f32', 'v_rsq_f32', 'v_sqrt_f32', 'v_sin_f32', 'v_cos_f32', 'v_rcp_iflag_f32')


class Ins:
    def __init__(self, text):
        self.text = text
        t = text.split(';')[0].strip()
        self.label = None
        self.mn = ''
        self.ops = []
        self.mods = ''
        self.kind = 'other'
        self.defs = set()
        self.uses = set()
        self.ws = 1
        self.passes = 0
        self.srcC = set()
        self.srcAB = set()
        self.store_data = set()
        self.target = None
        if t.endswith(':'):
            self.label = t[:-1]
            self.kind = 'label'
            self.ws = 0
            return
        if not t or t.startswith('.'):
            self.kind = 'dir'
            self.ws = 0
            return
        parts = t.split(None, 1)
        self.mn = mn = parts[0]
        rest = parts[1] if len(parts) > 1 else ''
        ops, cur, depth = [], '', 0
        for ch in rest:
            if ch in '[(':
                depth += 1
            if ch in '])':
                depth -= 1
            if ch == ',' and depth == 0:
                ops.append(cur.strip())
                cur = ''
            else:
                cur += ch
        if cur.strip():
            ops.append(cur.strip())
        if ops:
            last = ops[-1].split(None, 1)
            if len(last) > 1 and not ops[-1].startswith('hwreg'):
                ops[-1] = last[0]
                self.mods = last[1]
        self.ops = ops
        R = [regs_of(o) for o in ops]
        allr = set().union(*R) if R else set()
        if mn == 's_nop':
            self.kind = 'nop'
            self.ws = int(ops[0], 0) + 1
        elif mn.startswith('v_mfma') or mn.startswith('v_smfmac'):
            self.kind = 'mfma'
            self.passes = 8 if '32x32' in mn else 4
            self.defs = R[0]
            if mn.startswith('v_smfmac'):
                self.srcC = R[0]
                self.srcAB = R[1] | R[2] | R[3]
            else:
                self.srcC = R[3]
                self.srcAB = R[1] | R[2]
            self.uses = self.srcC | self.srcAB
        elif mn.startswith('v_'):
            self.kind = 'valu'
            if mn.startswith('v_permlane') and 'swap' in mn:
                self.defs = R[0] | R[1]
                self.uses = R[0] | R[1]
            elif mn.startswith('v_cmpx'):
                self.defs = R[0] | {('s', 'exec')}
                self.uses = set().union(*R[1:])
            elif mn.startswith(('v_add_co', 'v_sub_co', 'v_addc_co', 'v_subb_co', 'v_subrev_co')):
                self.defs = R[0] | R[1]
                self.uses = set().union(*R[2:])
            elif mn == 'v_nop':
                pass
            else:
                self.defs = R[0]
                self.uses = set().union(*R[1:]) if len(R) > 1 else set()
                if mn.startswith(('v_fmac', 'v_pk_fmac', 'v_dot2c', 'v_writelane')) or 'UNUSED_PRESERVE' in self.mods \
                        or ('_dpp' in mn):
                    self.uses |= R[0]
        elif mn.startswith('ds_'):
            self.kind = 'ds'
            if mn.startswith(('ds_read', 'ds_bpermute', 'ds_permute', 'ds_swizzle')) or '_rtn' in mn:
                self.defs = R[0]
                self.uses = set().union(*R[1:]) if len(R) > 1 else set()
            else:
                self.uses = allr
        elif mn.startswith(('buffer_', 'global_', 'flat_')):
            self.kind = 'vmem'
            is_lds = (' lds' in ' ' + self.mods) or ('_lds_' in mn)
            self.is_lds = is_lds
            if 'load' in mn and not is_lds:
                self.defs = R[0]
                self.uses = set().union(*R[1:])
            elif 'atomic' in mn:
                self.uses = allr
                if 'sc0' in self.mods:
                    self.defs = R[0]
            else:
                self.uses = allr
            if is_lds:
                self.uses |= {('s', 'm0')}
            if 'store' in mn and ('x3' in mn or 'x4' in mn):
                self.store_data = R[0] if mn.startswith('buffer_') else R[1]
        elif mn.startswith('s_'):
            self.kind = 'salu'
            if mn.startswith(('s_cbranch', 's_branch')):
                self.kind = 'branch'
                self.target = ops[0]
            elif mn.startswith(('s_cmp', 's_bitcmp', 's_waitcnt', 's_barrier', 's_sleep', 's_setprio', 's_endpgm')):
                self.uses = allr
            elif mn.startswith(('s_load', 's_memtime', 's_memrealtime', 's_buffer_load')):
                self.kind = 'smem'
                self.defs = R[0]
                self.uses = set().union(*R[1:]) if len(R) > 1 else set()
            else:
                self.defs = R[0] if R else set()
                self.uses = set().union(*R[1:]) if len(R) > 1 else set()
                if 'saveexec' in mn:
                    self.defs = self.defs | {('s', 'exec')}


def vg(s):
    return {r for r in s if r[0] in 'va'}


def sg(s):
    return {r for r in s if r[0] == 's'}


def need(p, c):
    n = 0
    if p.kind == 'valu':
        pv = vg(p.defs)
        ps = sg(p.defs)
        if c.kind == 'mfma':
            if pv & c.uses:
                n = max(n, 2)
            if ('s', 'exec') in ps:
                n = max(n, 4)
        if c.kind == 'valu':
            if c.mn.startswith('v_permlane'):
                if pv & c.uses:
                    n = max(n, 2)
                if ('s', 'exec') in ps:
                    n = max(n, 4)
            if '_dpp' in c.mn:
                if pv & c.uses:
                    n = max(n, 2)
                if ('s', 'exec') in ps:
                    n = max(n, 5)
            if c.mn.startswith(('v_readfirstlane', 'v_readlane')):
                if pv & c.uses:
                    n = max(n, 1)
                if ('s', 'exec') in ps:
                    n = max(n, 4)
            if c.mn.startswith(('v_readlane', 'v_writelane')) and (ps & c.uses):
                n = max(n, 4)
            if p.mn.startswith(TRANS) and (pv & c.uses) and not c.mn.startswith(TRANS):
                n = max(n, 1)
            if p.mn.startswith(TRANS) and (pv & c.uses):
                n = max(n, 1)
            if ('sdwa' in p.mn or 'op_sel' in p.mods) and (pv & (c.uses | c.defs)):
                n = max(n, 1)
            if ps & c.uses:
                n = max(n, 2)
        if c.kind == 'vmem' and (ps & c.uses):
            n = max(n, 5)
        if c.kind in ('vmem', 'ds') and ('sdwa' in p.mn or p.mn.startswith(TRANS)) and (pv & c.uses):
            n = max(n, 1)
    if p.kind == 'mfma':
        lat = {4: 8, 8: 12}[p.passes]
        if c.kind == 'mfma':
            if p.defs & c.srcAB:
                n = max(n, lat)
            if p.defs & c.srcC:
                if not (p.defs == c.srcC and p.mn == c.mn):
                    n = max(n, lat - 2)
            elif p.defs & c.defs:
                n = max(n, lat - 2)
        elif c.kind in ('valu', 'vmem', 'ds'):
            if p.defs & (c.uses | c.defs):
                n = max(n, lat)
        if c.kind == 'valu' and (p.srcC & c.defs):
            n = max(n, {4: 3, 8: 7}[p.passes])
    if p.kind == 'vmem' and p.store_data and (p.store_data & c.defs):
        n = max(n, 2 if c.kind == 'valu' else 1)
    if p.kind == 'salu' and ('s', 'm0') in p.defs and c.kind == 'vmem' and ('s', 'm0') in c.uses:
        n = max(n, 1)
    return n


class Asm:
    def __init__(self):
        self.ins = []
        self.padded = 0
        self.uid = 0

    def newlabel(self, base='L'):
        self.uid += 1
        return f'{base}_{self.uid}'

    def _required(self, hist, c):
        dist = 0
        req = 0
        for p in reversed(hist):
            if dist >= 20:
                break
            if p.ws == 0:
                continue
            n = need(p, c)
            if n - dist > req:
                req = n - dist
            dist += p.ws
        return req

    def __call__(self, text):
        for line in text.split('\n'):
            line = line.strip()
            if not line:
                continue
            c = Ins(line)
            if c.ws > 0 and c.kind != 'nop':
                req = self._required(self.ins[-40:], c)
                if req > 0:
                    self.padded += req
                    self.ins.append(Ins(f's_nop {req - 1}    ; auto'))
            self.ins.append(c)

    def label(self, name):
        self(f'{name}:')

    def comment(self, s):
        self.ins.append(Ins(f'; {s}'))

    def check_branches(self):
        labels = {i.label: k for k, i in enumerate(self.ins) if i.label}
        bad = []
        for k, i in enumerate(self.ins):
            if i.kind != 'branch' or i.target not in labels:
                continue
            hist = list(self.ins[max(0, k - 40):k + 1])
            pos = labels[i.target]
            cnt = 0
            while pos < len(self.ins) and cnt < 20:
                c = self.ins[pos]
                if c.ws > 0 and c.kind != 'nop':
                    req = self._required(hist, c)
                    if req > 0:
                        bad.append((i.text, c.text, req))
                hist.append(c)
                cnt += c.ws
                if c.mn in ('s_branch', 's_endpgm'):
                    break
                pos += 1
        return bad

    def text(self):
        out = []
        for i in self.ins:
            if i.kind == 'label' or i.kind == 'dir':
                out.append(i.text)
            else:
                out.append('    ' + i.text)
        return '\n'.join(out) + '\n'
```

```python
from gen import *
from role_s1 import head_srd

REGA, REGB = 0, 81920
SCR = 131072
MEMF, KXB, VXB, XQK, OX, DUMMY = 0, 9216, 17408, 25600, 29696, 31744
CEXP = 0x3e0293ee

vNEG, vIDX, vWL0, vWL1, vSC, vMW, vXW, vXR, vOW, vG, vPS, vPS1, vPL, vMS, vFLG, vDUM = range(16)
SQ, SK, SV, SO = s(52, 4), s(56, 4), s(60, 4), s(64, 4)
sTMP, sW1K, sSTEP, sMRD, sMRD8, sMWR, sMPO, sKVO, sKM, sF1, sF2, sPST = range(68, 80)
sPLD = 80
sPLX = 84
sXTRA, sMX, sC, sTOUCH, sMBASE, sW128, sKVM0, sFFFE = 88, 89, 90, 91, 92, 93, 94, 95


def wo(tile, kb2):
    return a((tile * 2 + kb2) * 8, 8)


def wq_loc(kb, t):
    i = kb * 2 + t
    return (a, 144 + 8 * i) if i < 14 else (v, 64 + 8 * (i - 14))


def wk_loc(kb, t):
    return v, 96 + 8 * (kb * 2 + t)


def wv8_loc(t):
    return v, 240 + 8 * t


def frag(loc):
    return loc[0](loc[1], 8)


def role_chain(g):
    A = g.A
    head_srd(g, 52, 12, 256, WBYTES)
    head_srd(g, 56, 14, 256, WBYTES)
    head_srd(g, 60, 16, 256, WBYTES)
    head_srd(g, 64, 18, 147456, WBYTES)
    A(f's_lshl_b32 {s(sW1K)}, {s(sWAVE)}, 10')
    vSRC, vLIN, vT0, vT1, vTO, vA0, vA1 = 5, 6, 7, 8, 9, 10, 11
    A(f'v_lshlrev_b32 {v(vLIN)}, 4, v0')
    A(f'v_add_u32 {v(vLIN)}, {s(sW1K)}, {v(vLIN)}')

    def dma_wo(kb2, region):
        for j in range(18):
            A(f's_add_u32 m0, {s(sW1K)}, {region + j * 4096}')
            A(f's_mov_b32 {s(sTMP)}, {kb2 * 73728 + j * 4096}')
            A(f'buffer_load_dwordx4 {v(vLIN)}, {SO}, {s(sTMP)} offen{g.o.wmod} lds')
        return 18

    def dma_blk(items, region):
        for bi, (srd, kb) in enumerate(items):
            for j in range(4):
                A(f's_add_u32 m0, {s(sW1K)}, {region + bi * 16384 + j * 4096}')
                A(f's_mov_b32 {s(sTMP)}, {(64 * kb + 16 * j) * 8192}')
                A(f'buffer_load_dwordx4 {v(vSRC)}, {srd}, {s(sTMP)} offen{g.o.wmod} lds')
        return 4 * len(items)

    n0 = dma_wo(0, REGA)
    n1 = dma_wo(1, REGB)
    A('v_lshrrev_b32 v16, 4, v0')
    A('v_and_b32 v17, 15, v0')
    A('v_and_b32 v18, 1, v16')
    A(f's_lshl_b32 {s(sT0)}, {s(sWAVE)}, 2')
    A(f'v_lshl_add_u32 v18, v18, 1, {s(sT0)}')
    A('v_xor_b32 v18, v18, v17')
    A('v_lshlrev_b32 v18, 4, v18')
    A(f'v_add_u32 v19, {s(sT0)}, v16')
    A(f'v_lshl_add_u32 {v(vSRC)}, v19, 13, v18')
    A('v_bfe_u32 v17, v0, 2, 1')
    A('v_bfe_u32 v18, v0, 3, 1')
    A('v_bfe_u32 v19, v0, 4, 1')
    A('v_bfe_u32 v20, v0, 5, 1')
    A('v_lshl_add_u32 v21, v20, 4, v17')
    A('v_lshl_add_u32 v21, v19, 2, v21')
    A('v_lshl_add_u32 v21, v18, 3, v21')
    A('v_lshlrev_b32 v22, 1, v17')
    A('v_lshl_add_u32 v22, v19, 2, v22')
    A('v_lshl_add_u32 v22, v18, 3, v22')
    A('v_bfe_u32 v23, v0, 1, 1')
    A(f'v_add_u32 v23, {s(sT0)}, v23')
    A('v_xor_b32 v23, v23, v22')
    A('v_lshlrev_b32 v23, 4, v23')
    A('v_lshl_add_u32 v23, v21, 8, v23')
    A('v_and_b32 v24, 1, v0')
    A(f'v_lshl_add_u32 {v(vT0)}, v24, 3, v23')
    A(f'v_xor_b32 {v(vT1)}, 32, {v(vT0)}')
    A('v_lshl_add_u32 v21, v18, 5, v17')
    A('v_lshl_add_u32 v21, v19, 4, v21')
    A('v_lshl_add_u32 v21, v20, 2, v21')
    A('v_mul_u32_u24 v21, 1152, v21')
    A('v_and_b32 v22, 3, v0')
    A('v_lshl_add_u32 v21, v22, 3, v21')
    A(f's_mul_i32 {s(sT0)}, {s(sWAVE)}, 288')
    A(f'v_add_u32 {v(vTO)}, {s(sT0)}, v21')
    A(f's_lshl_b32 {s(sT0)}, {s(sWAVE)}, 12')
    A(f'v_lshl_add_u32 {v(vWL0)}, v0, 4, {s(sT0)}')
    A(f'v_add_u32 {v(vWL1)}, 0x10000, {v(vWL0)}')

    def tr_wo(kb2, region):
        A(f'v_add_u32 {v(vA0)}, {region}, {v(vTO)}')
        for tile in range(9):
            base = (tile * 2 + kb2) * 8
            for u in range(4):
                A(f'ds_read_b64_tr_b16 {a(base + 2 * u, 2)}, {v(vA0)} offset:{(8 * (u >> 1) + 2 * (u & 1)) * 1152 + 32 * tile}')

    def tr_blk(locs, addr):
        A(f'v_add_u32 {v(vA0)}, {addr}, {v(vT0)}')
        A(f'v_add_u32 {v(vA1)}, {addr}, {v(vT1)}')
        for t in range(2):
            f, r = locs[t]
            for u in range(4):
                A(f'ds_read_b64_tr_b16 {f(r + 2 * u, 2)}, {v(vA0 + t)} offset:{(u & 1) * 512 + (u >> 1) * 8192}')

    def begin(nleft):
        A(f's_waitcnt vmcnt({nleft})')
        A('s_barrier')

    def end():
        A('s_waitcnt lgkmcnt(0)')
        A('s_barrier')

    begin(n1); tr_wo(0, REGA); end()
    n2 = dma_blk([(SQ, kb) for kb in range(5)], REGA)
    begin(n2); tr_wo(1, REGB); end()
    n3 = dma_blk([(SQ, kb) for kb in range(5, 9)] + [(SV, 8)], REGB)
    begin(n3)
    for kb in range(5):
        tr_blk([wq_loc(kb, 0), wq_loc(kb, 1)], REGA + kb * 16384)
    end()
    n4 = dma_blk([(SK, kb) for kb in range(5)], REGA)
    begin(n4)
    for kb in range(5, 9):
        tr_blk([wq_loc(kb, 0), wq_loc(kb, 1)], REGB + (kb - 5) * 16384)
    tr_blk([wv8_loc(0), wv8_loc(1)], REGB + 4 * 16384)
    end()
    n5 = dma_blk([(SK, kb) for kb in range(5, 9)], REGB)
    begin(n5)
    for kb in range(5):
        tr_blk([wk_loc(kb, 0), wk_loc(kb, 1)], REGA + kb * 16384)
    end()
    n6 = dma_blk([(SV, kb) for kb in range(5)], REGA)
    begin(n6)
    for kb in range(5, 9):
        tr_blk([wk_loc(kb, 0), wk_loc(kb, 1)], REGB + (kb - 5) * 16384)
    end()
    n7 = dma_blk([(SV, kb) for kb in range(5, 8)], REGB)

    def inplace(kbs):
        for i, kb in enumerate(kbs):
            tr_blk([(v, 16 + 16 * i), (v, 24 + 16 * i)], kb * 16384)
        end()
        for i, kb in enumerate(kbs):
            for q in range(4):
                A(f'ds_write_b128 {v(vWL0 + (kb >> 2))}, {v(16 + 16 * i + 4 * q, 4)} offset:{(kb & 3) * 16384 + q * 1024}')
        A('s_waitcnt lgkmcnt(0)')

    begin(n7)
    inplace([0, 1, 2])
    inplace([3, 4])
    begin(0)
    inplace([5, 6, 7])

    A(f'v_lshlrev_b32 v16, 4, v0')
    A(f'v_add_u32 {v(vSC)}, {SCR}, v16')
    A(f'v_add_u32 {v(vMW)}, {s(sW1K)}, {v(vSC)}')
    A('v_and_b32 v17, 15, v0')
    A('v_bfe_u32 v18, v0, 4, 1')
    A('v_lshrrev_b32 v19, 5, v0')
    A('v_lshrrev_b32 v20, 4, v0')
    A('v_and_b32 v21, 7, v0')
    A('v_bfe_u32 v22, v0, 3, 1')
    A('v_lshl_add_u32 v23, v19, 4, v17')
    A('v_lshlrev_b32 v23, 5, v23')
    A('v_lshl_add_u32 v23, v18, 3, v23')
    A(f's_add_u32 {s(sT0)}, {s(sW1K)}, {SCR + XQK}')
    A(f'v_add_u32 {v(vXW)}, {s(sT0)}, v23')
    A('v_bfe_u32 v23, v0, 2, 2')
    A('v_lshl_add_u32 v23, v18, 2, v23')
    A('v_lshl_add_u32 v23, v19, 4, v23')
    A('v_lshlrev_b32 v23, 5, v23')
    A('v_and_b32 v24, 3, v0')
    A('v_lshl_add_u32 v23, v24, 3, v23')
    A(f'v_add_u32 {v(vXR)}, {SCR + XQK}, v23')
    A('v_lshl_add_u32 v23, v20, 4, v21')
    A('v_lshlrev_b32 v23, 4, v23')
    A(f's_lshr_b32 {s(sT0)}, {s(sWAVE)}, 1')
    A(f's_lshl_b32 {s(sT0)}, {s(sT0)}, 10')
    A(f's_and_b32 {s(sT1)}, {s(sWAVE)}, 1')
    A(f's_lshl_b32 {s(sT1)}, {s(sT1)}, 7')
    A(f's_add_u32 {s(sT0)}, {s(sT0)}, {s(sT1)}')
    A(f's_add_u32 {s(sT0)}, {s(sT0)}, {SCR + OX}')
    A(f'v_add_u32 v23, {s(sT0)}, v23')
    A(f'v_add_u32 v24, {SCR + DUMMY}, v16')
    A('v_cmp_eq_u32 vcc, 0, v22')
    A(f'v_cndmask_b32 {v(vOW)}, v24, v23, vcc')
    A('v_mov_b32 v23, 0x44444444')
    A('v_mov_b32 v24, 0xeeeeeeee')
    A(f'v_cndmask_b32 {v(vIDX)}, v24, v23, vcc')
    A('v_mul_u32_u24 v23, 1152, v21')
    A('v_lshl_add_u32 v23, v20, 5, v23')
    A('v_lshl_add_u32 v23, v22, 4, v23')
    A(f's_lshl_b32 {s(sW128)}, {s(sWAVE)}, 7')
    A(f'v_add_u32 {v(vG)}, {s(sW128)}, v23')
    A('v_mul_u32_u24 v23, 9216, v18')
    A('v_lshl_add_u32 v23, v17, 4, v23')
    A(f's_mul_i32 {s(sT0)}, {s(sWAVE)}, 2304')
    A(f'v_add_u32 v23, {s(sT0)}, v23')
    A(f'v_lshl_add_u32 {v(vPS1)}, v19, 3, v23')
    A('v_lshl_add_u32 v23, v19, 8, v23')
    A(f'v_add_u32 {v(vPS)}, 256, v23')
    A('v_lshrrev_b32 v23, 3, v0')
    A('v_mul_u32_u24 v23, 18432, v23')
    A(f'v_lshl_add_u32 {v(vPL)}, v21, 4, v23')
    A('v_mul_u32_u24 v23, 1152, v20')
    A(f'v_lshl_add_u32 {v(vMS)}, v21, 1, v23')
    sMU, sOCT, sPB = 96, 97, sTMP
    A(f's_mul_i32 {s(sPB)}, {s(sBR)}, {32 * 18432}')
    A(f's_add_u32 {s(sPB)}, {s(sPB)}, {PART}')
    A(f's_mul_i32 {s(sPST)}, {s(sIDX)}, 18432')
    A(f's_add_u32 {s(sPST)}, {s(sPST)}, {s(sPB)}')
    A(f's_lshr_b32 {s(sMU)}, {s(sIDX)}, 4')
    A(f's_bfe_u32 {s(sOCT)}, {s(sIDX)}, 0x20002')
    A(f's_mul_i32 {s(sOCT)}, {s(sOCT)}, 18')
    A(f's_bfe_u32 {s(sT0)}, {s(sIDX)}, 0x10001')
    A(f's_add_u32 {s(sT0)}, {s(sT0)}, {s(sOCT)}')
    A(f's_and_b32 {s(sT1)}, {s(sIDX)}, 3')
    A(f's_add_u32 {s(sOCT)}, {s(sOCT)}, {s(sT1)}')
    A(f's_lshl_b32 {s(sT1)}, {s(sWAVE)}, 2')
    A(f's_add_u32 {s(sOCT)}, {s(sOCT)}, {s(sT1)}')
    A(f's_add_u32 {s(sOCT)}, {s(sOCT)}, 2')
    A(f's_sub_u32 {s(sMX)}, {s(sT0)}, {s(sOCT)}')
    A(f's_lshl_b32 {s(sMX)}, {s(sMX)}, 4')
    A(f's_mul_i32 {s(sT1)}, {s(sMU)}, 9216')
    A(f's_add_u32 {s(sPB)}, {s(sPB)}, {s(sT1)}')
    A(f's_lshl_b32 {s(sT0)}, {s(sT0)}, 7')
    A(f's_add_u32 {s(sPLX)}, {s(sPB)}, {s(sT0)}')
    A(f's_lshl_b32 {s(sT0)}, {s(sOCT)}, 7')
    A(f's_add_u32 {s(sPLD)}, {s(sPB)}, {s(sT0)}')
    for i in range(1, 4):
        A(f's_add_u32 {s(sPLD + i)}, {s(sPLD)}, {i * 8 * 18432}')
        A(f's_add_u32 {s(sPLX + i)}, {s(sPLX)}, {i * 8 * 18432}')
    A(f's_mul_i32 {s(sT0)}, {s(sMU)}, 4608')
    A(f's_lshl_b32 {s(sT1)}, {s(sOCT)}, 4')
    A(f's_add_u32 {s(sT0)}, {s(sT0)}, {s(sT1)}')
    A(f'v_add_u32 {v(vMS)}, {s(sT0)}, {v(vMS)}')
    A(f's_and_b32 {s(sT0)}, {s(sIDX)}, 1')
    A(f's_or_b32 {s(sXTRA)}, {s(sT0)}, {s(sWAVE)}')
    A(f's_mul_i32 {s(sMBASE)}, {s(sBR)}, {3 * 16384}')
    A(f's_add_u32 {s(sMBASE)}, {s(sMBASE)}, {MEMR}')
    A(f's_mov_b32 {s(sMWR)}, {s(sMBASE)}')
    A(f's_add_u32 {s(sMPO)}, {s(sMBASE)}, {2 * 16384}')
    A(f's_lshl_b32 {s(sT0)}, {s(sBR)}, 11')
    A(f's_add_u32 {s(sT0)}, {s(sT0)}, {s(sIDX)}')
    A(f's_lshl_b32 {s(sKVO)}, {s(sT0)}, 14')
    A(f's_lshl_b32 {s(sT1)}, {s(sWAVE)}, 12')
    A(f's_add_u32 {s(sKVO)}, {s(sKVO)}, {s(sT1)}')
    A(f's_add_u32 {s(sTOUCH)}, {s(sKVO)}, {KV - 4 * SCR + 32 * 16384}')
    A(f's_add_u32 {s(sKVO)}, {s(sKVO)}, {KV - SCR}')
    A(f's_add_u32 {s(sKVM0)}, {s(sT1)}, {SCR + KXB}')
    A(f's_lshl_b32 {s(sKM)}, {s(sT0)}, 12')
    A(f's_add_u32 {s(sKM)}, {s(sKM)}, {KMVM - SCR}')
    A(f's_lshl_b32 {s(sT0)}, {s(sBR)}, 5')
    A(f's_add_u32 {s(sT0)}, {s(sT0)}, {s(sIDX)}')
    A(f's_lshl_b32 {s(sT0)}, {s(sT0)}, 7')
    A(f's_add_u32 {s(sF1)}, {s(sT0)}, {F1}')
    A(f's_lshl_b32 {s(sT1)}, {s(sWAVE)}, 2')
    A(f's_add_u32 {s(sF2)}, {s(sT0)}, {s(sT1)}')
    A(f's_add_u32 {s(sF2)}, {s(sF2)}, {F2}')
    A(f's_mov_b32 {s(sC)}, {CEXP}')
    A(f's_mov_b32 {s(sFFFE)}, 0xfffe')
    A(f's_mov_b32 {s(sSTEP)}, 0')
    A('v_lshlrev_b32 v16, 2, v0')
    g.wait_d(17, 16)
    A(f's_mov_b32 {s(sMODE)}, 0')
    for x in range(8):
        A(f'v_readlane_b32 {s(sT0)}, v17, {g.CLANES[x]}')
        A(f's_cmp_lg_u32 {s(sT0)}, 32')
        A(f's_cselect_b32 {s(sMODE)}, 1, {s(sMODE)}')
    if g.o.force_safe:
        A(f's_mov_b32 {s(sMODE)}, 1')
    A('v_mov_b32 v16, 0xff61b1e6')
    A('v_cmp_gt_u32 vcc, 32, v0')
    A(f'v_cndmask_b32 {v(vNEG)}, 0, v16, vcc')
    g.srd(52, 10, 11, 9216)
    A(f's_sub_u32 {s(sT0)}, 1024, {s(sW128)}')
    A(f'buffer_load_dwordx4 v[16:19], {v(vG)}, {SQ}, 0 offen')
    A(f'buffer_load_dwordx4 v[20:23], {v(vG)}, {SQ}, 0 offen offset:512')
    A(f'buffer_load_dwordx4 v[24:27], {v(vG)}, {SQ}, {s(sT0)} offen')
    lp = A.newlabel('kv0')
    A.label(lp)
    A(f'buffer_load_dword {v(vFLG)}, off, {WS}, {s(sF1)} sc1')
    A('s_waitcnt vmcnt(0)')
    A(f'v_readfirstlane_b32 {s(sT0)}, {v(vFLG)}')
    A(f's_cmp_ge_u32 {s(sT0)}, 1')
    ok = A.newlabel('kv0ok')
    A(f's_cbranch_scc1 {ok}')
    A('s_sleep 2')
    g.spin_fail(2)
    A(f's_branch {lp}')
    A.label(ok)
    A(f's_mov_b32 m0, {s(sKVM0)}')
    A(f'ds_write_b128 {v(vMW)}, v[16:19] offset:{MEMF}')
    A(f'ds_write_b128 {v(vMW)}, v[20:23] offset:{MEMF + 4096}')
    A(f'ds_write_b128 {v(vSC)}, v[24:27] offset:{MEMF + 8192}')
    for q in range(4):
        A(f'buffer_load_dwordx4 {v(vSC)}, {WS}, {s(sKVO)} offen offset:{q * 1024} sc1 lds')
    A(f's_add_u32 {s(sKVO)}, {s(sKVO)}, {32 * 16384}')
    A('s_waitcnt vmcnt(0) lgkmcnt(0)')
    if g.o.timing:
        A('s_memtime s[22:23]')
        for k in range(8):
            A(f's_mov_b32 s{24 + k}, 0')
        A('s_waitcnt lgkmcnt(0)')
    prep_qkv(g, True)
    A(f's_cmp_eq_u32 {s(sMODE)}, 0')
    A('s_cbranch_scc0 CH_safe_ENTER')
    A('s_branch CH_fast_ENTER')
    step_loop(g, 'fast', '')
    step_loop(g, 'safe', ' sc1')


A0, A1, WB0, WB1 = 16, 20, 24, 32
Q0, Q1, K0, K1, V0, V1 = 40, 44, 48, 52, 56, 60


def wbuf_read(g, kb, t):
    for hf in range(2):
        g.A(f'ds_read_b128 {v(WB0 + 8 * t + 4 * hf, 4)}, {v(vWL0 + (kb >> 2))} offset:{(kb & 3) * 16384 + t * 2048 + hf * 1024}')


def zero(g, r, n):
    for i in range(0, n, 2):
        g.A(f'v_mov_b64 {v(r + i, 2)}, 0')


def prep_qkv(g, all_acc):
    wbuf_read(g, 0, 0)
    wbuf_read(g, 0, 1)
    zero(g, Q0, 24 if all_acc else 16)


def stamp(g, k):
    if g.o.timing:
        A = g.A
        A('s_waitcnt lgkmcnt(0)')
        A('s_memtime s[20:21]')
        A('s_waitcnt lgkmcnt(0)')
        A('s_sub_u32 s23, s20, s22')
        A(f's_add_u32 s{24 + k}, s{24 + k}, s23')
        A('s_mov_b32 s22, s20')


def step_loop(g, name, sc):
    A = g.A
    L = f'CH_{name}_'
    A('.p2align 6')
    A.label(L + 'TOP')
    prep_qkv(g, False)
    A.label(L + 'GATHER')
    A(f'buffer_load_dwordx4 v[16:19], {v(vG)}, {WS}, {s(sMRD)} offen sc1')
    A(f'buffer_load_dwordx4 v[20:23], {v(vG)}, {WS}, {s(sMRD)} offen offset:512 sc1')
    A(f'buffer_load_dwordx4 v[60:63], {v(vG)}, {WS}, {s(sMRD8)} offen sc1')
    A('s_waitcnt vmcnt(0)')
    A(f'ds_write_b128 {v(vMW)}, v[16:19] offset:{MEMF}')
    A(f'ds_write_b128 {v(vMW)}, v[20:23] offset:{MEMF + 4096}')
    A(f'ds_write_b128 {v(vSC)}, v[60:63] offset:{MEMF + 8192}')
    A('v_pk_max_u16 v56, v16, v17')
    A('v_pk_max_u16 v57, v18, v19')
    A('v_pk_max_u16 v58, v20, v21')
    A('v_pk_max_u16 v59, v22, v23')
    A('v_pk_max_u16 v56, v56, v60')
    A('v_pk_max_u16 v57, v57, v61')
    A('v_pk_max_u16 v58, v58, v62')
    A('v_pk_max_u16 v59, v59, v63')
    A('v_pk_max_u16 v56, v56, v57')
    A('v_pk_max_u16 v58, v58, v59')
    A('v_pk_max_u16 v56, v56, v58')
    A('v_max_u16_sdwa v56, v56, v56 dst_sel:DWORD dst_unused:UNUSED_PAD src0_sel:WORD_0 src1_sel:WORD_1')
    A(f'v_cmp_lt_u32 vcc, {s(sFFFE)}, v56')
    A(f's_cbranch_vccz {L}GOT')
    g.spin_fail(3)
    A(f's_branch {L}GATHER')
    A.label(L + 'GOT')
    zero(g, V0, 8)
    A(f'v_mov_b32 {v(vDUM)}, {s(sSTEP)}')
    A(f'buffer_store_dword {v(vDUM)}, off, {WS}, {s(sF2)} sc1')
    A('s_waitcnt lgkmcnt(0)')
    A.label(L + 'ENTER')
    A('s_barrier')
    stamp(g, 0)
    A(f'ds_read_b128 {v(A0, 4)}, {v(vSC)} offset:{MEMF}')
    A(f'ds_read_b128 {v(A1, 4)}, {v(vSC)} offset:{MEMF + 1024}')
    A(f'buffer_load_dword {v(vFLG)}, off, {WS}, {s(sF1)} sc1')
    A(f'v_lshlrev_b32 {v(vDUM)}, 2, {v(vSC)}')
    A(f'buffer_load_dword {v(vDUM)}, {v(vDUM)}, {WS}, {s(sTOUCH)} offen sc1')
    A(f's_add_u32 {s(sTOUCH)}, {s(sTOUCH)}, {32 * 16384}')

    def sm(acc, af, b):
        A(f'v_smfmac_f32_16x16x64_bf16 {v(acc, 4)}, {v(af, 4)}, {b}, {v(vIDX)}')

    for kb in range(9):
        af = A0 if kb % 2 == 0 else A1
        A(f's_waitcnt lgkmcnt({1 if kb < 8 else 0})')
        if kb < 8:
            sm(V0, af, v(WB0, 8))
            sm(V1, af, v(WB1, 8))
        else:
            sm(V0, af, frag(wv8_loc(0)))
            sm(V1, af, frag(wv8_loc(1)))
        if kb + 1 < 8:
            wbuf_read(g, kb + 1, 0)
        sm(Q0, af, frag(wq_loc(kb, 0)))
        if kb + 1 < 8:
            wbuf_read(g, kb + 1, 1)
        sm(Q1, af, frag(wq_loc(kb, 1)))
        sm(K0, af, frag(wk_loc(kb, 0)))
        sm(K1, af, frag(wk_loc(kb, 1)))
        if kb + 2 < 9:
            A(f'ds_read_b128 {v(af, 4)}, {v(vSC)} offset:{MEMF + (kb + 2) * 1024}')
    stamp(g, 1)
    def comb(t0, t1, dst):
        for r in range(4):
            A(f'v_permlane32_swap_b32 {v(t0 + r)}, {v(t1 + r)}')
        A(f'v_pk_add_f32 {v(t0, 2)}, {v(t0, 2)}, {v(t1, 2)}')
        A(f'v_pk_add_f32 {v(t0 + 2, 2)}, {v(t0 + 2, 2)}, {v(t1 + 2, 2)}')
        A(f'v_cvt_pk_bf16_f32 {v(dst)}, {v(t0)}, {v(t0 + 1)}')
        A(f'v_cvt_pk_bf16_f32 {v(dst + 1)}, {v(t0 + 2)}, {v(t0 + 3)}')
    comb(V0, V1, 22)
    comb(Q0, Q1, 18)
    comb(K0, K1, 20)
    A(f'ds_write2_b64 {v(vXW)}, v[18:19], v[20:21] offset0:0 offset1:2')
    A(f'buffer_store_dwordx4 v[20:23], {v(vMW)}, {WS}, {s(sKM)} offen sc1')
    A(f's_add_u32 {s(sKM)}, {s(sKM)}, {32 * 4096}')
    A(f's_cmp_eq_u32 {s(sSTEP)}, 63')
    A(f's_cbranch_scc1 {L}LAST')
    KB = [44, 48, 16, 20]
    A(f'ds_read_b128 {v(KB[0], 4)}, {v(vSC)} offset:{KXB}')
    A(f'ds_read_b128 {v(KB[1], 4)}, {v(vSC)} offset:{KXB + 1024}')
    A('v_mov_b64 v[24:25], v[22:23]')
    A('v_mov_b64 v[26:27], v[22:23]')
    S0, S1, SM = 52, 56, 60
    for r in range(4):
        A(f'v_mov_b32 {v(SM + r)}, {v(vNEG)}')
    A('v_permlane32_swap_b32 v24, v26')
    A('v_permlane32_swap_b32 v25, v27')
    A('s_waitcnt lgkmcnt(2)')
    A('s_barrier')
    X = 28
    for ks in range(4):
        A(f'ds_read_b64_tr_b16 {v(X + 4 * ks, 2)}, {v(vXR)} offset:{ks * 1024}')
        A(f'ds_read_b64_tr_b16 {v(X + 4 * ks + 2, 2)}, {v(vXR)} offset:{ks * 1024 + 256}')
        if ks == 0:
            A(f'ds_read_b128 {v(KB[2], 4)}, {v(vSC)} offset:{KXB + 2048}')
            A(f'ds_read_b128 {v(KB[3], 4)}, {v(vSC)} offset:{KXB + 3072}')
    waits = [8, 6, 2, 2]
    for ks in range(4):
        x = v(X + 4 * ks, 4)
        A(f's_waitcnt lgkmcnt({waits[ks]})')
        b0, b1 = KB[(2 * ks) & 3], KB[(2 * ks + 1) & 3]
        A(f'v_mfma_f32_16x16x32_bf16 {v(S0, 4)}, {v(b0, 4)}, {x}, {v(S0, 4) if ks else 0}')
        A(f'v_mfma_f32_16x16x32_bf16 {v(S1, 4)}, {v(b1, 4)}, {x}, {v(S1, 4) if ks else 0}')
        if ks < 2:
            A(f'ds_read_b128 {v(b0, 4)}, {v(vSC)} offset:{KXB + (2 * ks + 4) * 1024}')
            A(f'ds_read_b128 {v(b1, 4)}, {v(vSC)} offset:{KXB + (2 * ks + 5) * 1024}')
        if ks == 2:
            A(f'ds_read_b128 {v(b0, 4)}, {v(vMW)} offset:{VXB}')
            A(f'ds_read_b128 {v(b1, 4)}, {v(vMW)} offset:{VXB + 4096}')
        A(f'v_mfma_f32_16x16x32_bf16 {v(SM, 4)}, {x}, {x}, {v(SM, 4)}')
    VX0, VX1 = KB[0], KB[1]
    stamp(g, 2)
    ONE = 40
    PX, PM, MX, TT = 28, 32, 34, 35
    A(f'v_max3_f32 {v(MX)}, {v(S0)}, {v(S0 + 1)}, {v(S0 + 2)}')
    A(f'v_max3_f32 {v(TT)}, {v(S1)}, {v(S1 + 1)}, {v(S1 + 2)}')
    A(f'v_max3_f32 {v(MX)}, {v(MX)}, {v(S0 + 3)}, {v(S1 + 3)}')
    A(f'v_max3_f32 {v(TT)}, {v(TT)}, {v(SM)}, {v(SM + 1)}')
    A(f'v_max3_f32 {v(MX)}, {v(MX)}, {v(SM + 2)}, {v(SM + 3)}')
    A(f'v_max_f32 {v(MX)}, {v(MX)}, {v(TT)}')
    A(f'v_mov_b32 {v(TT)}, {v(MX)}')
    A(f'v_mov_b32 {v(ONE)}, 0x3f803f80')
    A(f'v_mov_b32 {v(ONE + 1)}, 0x3f803f80')
    A(f'v_permlane32_swap_b32 {v(MX)}, {v(TT)}')
    A(f'v_max_f32 {v(MX)}, {v(MX)}, {v(TT)}')
    A(f'v_mov_b32 {v(TT)}, {v(MX)}')
    A(f'v_mov_b32 {v(ONE + 2)}, 0x3f803f80')
    A(f'v_mov_b32 {v(ONE + 3)}, 0x3f803f80')
    A(f'v_permlane16_swap_b32 {v(MX)}, {v(TT)}')
    A(f'v_max_f32 {v(MX)}, {v(MX)}, {v(TT)}')
    A(f'v_mul_f32 {v(MX)}, {s(sC)}, {v(MX)}')
    for r in range(12):
        A(f'v_fma_f32 {v(S0 + r)}, {v(S0 + r)}, {s(sC)}, -{v(MX)}')
    for r in range(12):
        A(f'v_exp_f32 {v(S0 + r)}, {v(S0 + r)}')
    for i in range(6):
        A(f'v_cvt_pk_bf16_f32 {v(PX + i)}, {v(S0 + 2 * i)}, {v(S0 + 2 * i + 1)}')
    O0, O1, LS = 52, 56, 60
    A('s_waitcnt lgkmcnt(0)')
    A(f'v_mfma_f32_16x16x32_bf16 {v(LS, 4)}, {v(ONE, 4)}, {v(PX, 4)}, 0')
    A(f'v_mfma_f32_16x16x16_bf16 {v(LS, 4)}, {v(ONE, 2)}, {v(PM, 2)}, {v(LS, 4)}')
    A(f'v_mfma_f32_16x16x32_bf16 {v(O0, 4)}, {v(VX0, 4)}, {v(PX, 4)}, 0')
    A(f'v_mfma_f32_16x16x32_bf16 {v(O1, 4)}, {v(VX1, 4)}, {v(PX, 4)}, 0')
    A(f'v_mfma_f32_16x16x16_bf16 {v(O0, 4)}, v[24:25], {v(PM, 2)}, {v(O0, 4)}')
    A(f'v_mfma_f32_16x16x16_bf16 {v(O1, 4)}, v[26:27], {v(PM, 2)}, {v(O1, 4)}')
    zero(g, 36, 16)
    A(f'v_rcp_f32 {v(MX)}, {v(LS)}')
    zero(g, 28, 6)
    for i in range(4):
        A(f'v_pk_mul_f32 {v(O0 + 2 * i, 2)}, {v(O0 + 2 * i, 2)}, {v(MX, 2)} op_sel_hi:[1,0]')
    for i in range(4):
        A(f'v_cvt_pk_bf16_f32 {v(16 + i)}, {v(O0 + 2 * i)}, {v(O0 + 2 * i + 1)}')
    A(f'ds_write_b128 {v(vOW)}, v[16:19]')
    zero(g, 34, 2)
    zero(g, 52, 12)
    A('s_waitcnt vmcnt(2)')
    A(f's_add_u32 {s(sT0)}, {s(sSTEP)}, 2')
    A(f'v_cmp_gt_u32 vcc, {s(sT0)}, {v(vFLG)}')
    A(f's_cbranch_vccnz {L}KVWAIT')
    A.label(L + 'KVOK')
    A('s_waitcnt lgkmcnt(0)')
    A('s_barrier')
    A(f'ds_read_b128 v[20:23], {v(vSC)} offset:{OX}')
    A(f'ds_read_b128 v[24:27], {v(vSC)} offset:{OX + 1024}')
    for q in range(4):
        A(f'buffer_load_dwordx4 {v(vSC)}, {WS}, {s(sKVO)} offen offset:{q * 1024} sc1 lds')
    A(f's_add_u32 {s(sKVO)}, {s(sKVO)}, {32 * 16384}')
    stamp(g, 3)
    ACC = 28

    def tile(t):
        sm(ACC + 4 * t, 20, wo(t, 0))
        sm(ACC + 4 * t, 24, wo(t, 1))

    def tag(r):
        A(f'v_mov_b32_sdwa {v(r)}, {s(sSTEP)} dst_sel:BYTE_0 dst_unused:UNUSED_PRESERVE src0_sel:BYTE_0')

    def pub_single():
        t0 = ACC
        A(f'v_permlane32_swap_b32 {v(t0)}, {v(t0 + 2)}')
        A(f'v_permlane32_swap_b32 {v(t0 + 1)}, {v(t0 + 3)}')
        A(f'v_pk_add_f32 {v(t0, 2)}, {v(t0, 2)}, {v(t0 + 2, 2)}')
        tag(t0)
        A(f'buffer_store_dwordx2 {v(t0, 2)}, {v(vPS1)}, {WS}, {s(sPST)} offen{sc}')

    def pub_pair(p):
        t0 = ACC + 4 + 8 * p
        t1 = t0 + 4
        for r in range(4):
            A(f'v_permlane32_swap_b32 {v(t0 + r)}, {v(t1 + r)}')
        A(f'v_pk_add_f32 {v(t0, 2)}, {v(t0, 2)}, {v(t1, 2)}')
        A(f'v_pk_add_f32 {v(t0 + 2, 2)}, {v(t0 + 2, 2)}, {v(t1 + 2, 2)}')
        tag(t0)
        A(f'buffer_store_dwordx4 {v(t0, 4)}, {v(vPS)}, {WS}, {s(sPST)} offen offset:{p * 512}{sc}')

    A('s_waitcnt lgkmcnt(0)')
    tile(0); tile(1); tile(2); tile(3); tile(4)
    pub_single()
    tile(5); tile(6)
    pub_pair(0)
    tile(7); tile(8)
    pub_pair(1)
    pub_pair(2)
    pub_pair(3)
    stamp(g, 4)

    def loads(base, so):
        for i in range(4):
            A(f'buffer_load_dwordx4 {v(base + 4 * i, 4)}, {v(vPL)}, {WS}, {s(so + i)} offen sc1')

    def check(regs, retry):
        for i, r in enumerate(regs):
            A(f'v_cmp_ne_u32_sdwa {"vcc" if i == 0 else s(96, 2)}, {v(r)}, {s(sSTEP)} src0_sel:BYTE_0 src1_sel:DWORD')
            if i:
                A(f's_or_b64 vcc, vcc, {s(96, 2)}')
        A(f's_cbranch_vccnz {retry}')

    def finish(base, so_w, so_p):
        b = base
        A(f'v_pk_add_f32 {v(b, 2)}, {v(b, 2)}, {v(b + 4, 2)}')
        A(f'v_pk_add_f32 {v(b + 2, 2)}, {v(b + 2, 2)}, {v(b + 6, 2)}')
        A(f'v_pk_add_f32 {v(b + 8, 2)}, {v(b + 8, 2)}, {v(b + 12, 2)}')
        A(f'v_pk_add_f32 {v(b + 10, 2)}, {v(b + 10, 2)}, {v(b + 14, 2)}')
        A(f'v_pk_add_f32 {v(b, 2)}, {v(b, 2)}, {v(b + 8, 2)}')
        A(f'v_pk_add_f32 {v(b + 2, 2)}, {v(b + 2, 2)}, {v(b + 10, 2)}')
        A(f'v_mov_b32 {v(b + 4)}, -1')
        A(f'v_permlane32_swap_b32 {v(b)}, {v(b + 2)}')
        A(f'v_permlane32_swap_b32 {v(b + 1)}, {v(b + 3)}')
        A(f'v_pk_add_f32 {v(b, 2)}, {v(b, 2)}, {v(b + 2, 2)}')
        A(f'v_permlane16_swap_b32 {v(b)}, {v(b + 1)}')
        A(f'v_add_f32 {v(b)}, {v(b)}, {v(b + 1)}')
        A(f'v_add_f32_dpp {v(b)}, {v(b)}, {v(b)} row_ror:8 row_mask:0xf bank_mask:0xf')
        A(f'v_cvt_pk_bf16_f32 {v(b)}, {v(b)}, {v(b)}')
        A(f'v_min_u16 {v(b)}, {s(sFFFE)}, {v(b)}')
        A(f'buffer_store_short {v(b)}, {v(vMS)}, {WS}, {s(so_w)} offen{sc}')
        A(f'buffer_store_short {v(b + 4)}, {v(vMS)}, {WS}, {s(so_p)} offen{sc}')

    A(f's_cmp_eq_u32 {s(sXTRA)}, 0')
    A(f's_cbranch_scc0 {L}RED')
    A.label(L + 'REDX')
    loads(32, sPLX)
    A(f's_add_u32 {s(sT0)}, {s(sMWR)}, {s(sMX)}')
    A(f's_add_u32 {s(sT1)}, {s(sMPO)}, {s(sMX)}')
    A('s_waitcnt vmcnt(0)')
    check([32, 34, 36, 38, 40, 42, 44, 46], L + 'REDX_RETRY')
    finish(32, sT0, sT1)
    A.label(L + 'RED')
    loads(16, sPLD)
    A('s_waitcnt vmcnt(0)')
    check([16, 20, 24, 28], L + 'RED_RETRY')
    finish(16, sMWR, sMPO)
    A(f's_mov_b32 {s(sMRD)}, {s(sMWR)}')
    A(f's_sub_u32 {s(sMRD8)}, {s(sMRD)}, {s(sW128)}')
    A(f's_add_u32 {s(sMRD8)}, {s(sMRD8)}, 1024')
    A(f's_add_u32 {s(sT0)}, {s(sMBASE)}, {3 * 16384}')
    A(f's_add_u32 {s(sMWR)}, {s(sMWR)}, 16384')
    A(f's_cmp_eq_u32 {s(sMWR)}, {s(sT0)}')
    A(f's_cselect_b32 {s(sMWR)}, {s(sMBASE)}, {s(sMWR)}')
    A(f's_mov_b32 {s(sMPO)}, {s(sMRD)}')
    A(f's_add_u32 {s(sSTEP)}, {s(sSTEP)}, 1')
    stamp(g, 5)
    A(f's_branch {L}TOP')
    A.label(L + 'RED_RETRY')
    g.spin_fail(4)
    A(f's_branch {L}RED')
    A.label(L + 'REDX_RETRY')
    g.spin_fail(5)
    A(f's_branch {L}REDX')
    A.label(L + 'KVWAIT')
    A(f'buffer_load_dword {v(vFLG)}, off, {WS}, {s(sF1)} sc1')
    g.spin_fail(6)
    A(f's_add_u32 {s(sT0)}, {s(sSTEP)}, 2')
    A('s_waitcnt vmcnt(0)')
    A(f'v_cmp_gt_u32 vcc, {s(sT0)}, {v(vFLG)}')
    A(f's_cbranch_vccnz {L}KVWAIT')
    A(f's_branch {L}KVOK')
    A.label(L + 'LAST')
    A('s_waitcnt vmcnt(0)')
    A(f'v_mov_b32 {v(vDUM)}, 64')
    A(f'buffer_store_dword {v(vDUM)}, off, {WS}, {s(sF2)} sc1')
    if g.o.timing:
        A(f's_lshl_b32 {s(sT0)}, {s(sGRP)}, 7')
        A(f's_lshl_b32 {s(sT1)}, {s(sIDX)}, 2')
        A(f's_add_u32 {s(sT0)}, {s(sT0)}, {s(sT1)}')
        A(f's_add_u32 {s(sT0)}, {s(sT0)}, {s(sWAVE)}')
        A(f's_lshl_b32 {s(sT0)}, {s(sT0)}, 6')
        A(f's_add_u32 {s(sT0)}, {s(sT0)}, {TIMING}')
        for k in range(8):
            A(f'v_mov_b32 {v(16 + k)}, s{24 + k}')
        A(f'v_mov_b32 v23, {s(sSPIN)}')
        A(f'buffer_store_dwordx4 v[16:19], off, {WS}, {s(sT0)} sc1')
        A(f'buffer_store_dwordx4 v[20:23], off, {WS}, {s(sT0)} offset:16 sc1')
    A('s_branch END')
```

```python
from gen import *

REGA, REGB = 0, 81920


def dma_blocks32(g, srd, vsrc, blocks, region, stmp):
    A = g.A
    for bi, kb in enumerate(blocks):
        for j in range(4):
            A(f's_add_u32 m0, {s(stmp + 1)}, {region + bi * 16384 + j * 4096}')
            A(f's_mov_b32 {s(stmp)}, {(64 * kb + 16 * j) * 8192}')
            A(f'buffer_load_dwordx4 {v(vsrc)}, {srd}, {s(stmp)} offen{g.o.wmod} lds')
    return 4 * len(blocks)


def setup_w32(g, vsrc, vtr, t0):
    A = g.A
    A(f'v_lshrrev_b32 {v(t0)}, 4, v0')
    A(f'v_and_b32 {v(t0 + 1)}, 15, v0')
    A(f'v_lshlrev_b32 {v(t0 + 2)}, 2, {v(t0)}')
    A(f'v_xor_b32 {v(t0 + 2)}, {v(t0 + 2)}, {v(t0 + 1)}')
    A(f'v_lshlrev_b32 {v(t0 + 2)}, 4, {v(t0 + 2)}')
    A(f's_lshl_b32 {s(sT0)}, {s(sWAVE)}, 2')
    A(f'v_add_u32 {v(t0 + 3)}, {s(sT0)}, {v(t0)}')
    A(f'v_lshl_add_u32 {v(vsrc)}, {v(t0 + 3)}, 13, {v(t0 + 2)}')
    A(f'v_bfe_u32 {v(t0 + 1)}, v0, 2, 2')
    A(f'v_lshrrev_b32 {v(t0 + 2)}, 5, v0')
    A(f'v_lshl_add_u32 {v(t0 + 2)}, {v(t0 + 2)}, 3, {v(t0 + 1)}')
    A(f'v_lshlrev_b32 {v(vtr)}, 8, {v(t0 + 2)}')
    A(f'v_bfe_u32 {v(t0 + 2)}, v0, 4, 1')
    A(f'v_lshlrev_b32 {v(t0 + 2)}, 1, {v(t0 + 2)}')
    A(f'v_bfe_u32 {v(t0 + 3)}, v0, 1, 1')
    A(f'v_add3_u32 {v(t0 + 2)}, {v(t0 + 2)}, {v(t0 + 3)}, {s(sT0)}')
    A(f'v_lshlrev_b32 {v(t0 + 1)}, 2, {v(t0 + 1)}')
    A(f'v_xor_b32 {v(t0 + 2)}, {v(t0 + 2)}, {v(t0 + 1)}')
    A(f'v_lshl_add_u32 {v(vtr)}, {v(t0 + 2)}, 4, {v(vtr)}')
    A(f'v_and_b32 {v(t0 + 2)}, 1, v0')
    A(f'v_lshl_add_u32 {v(vtr)}, {v(t0 + 2)}, 3, {v(vtr)}')


def tr_blocks32(g, vtr, vtmp, blocks, region, dst):
    A = g.A
    for bi, kb in enumerate(blocks):
        A(f'v_add_u32 {v(vtmp)}, {region + bi * 16384}, {v(vtr)}')
        for kl in range(4):
            f, r = dst(4 * kb + kl)
            for u in range(2):
                A(f'ds_read_b64_tr_b16 {f(r + 2 * u, 2)}, {v(vtmp)} offset:{kl * 4096 + u * 1024}')


def head_srd(g, d, lo, shift_mul, total):
    A = g.A
    A(f's_mul_i32 {s(sT0)}, {s(sIDX)}, {shift_mul}')
    A(f's_add_u32 {s(d)}, {s(lo)}, {s(sT0)}')
    A(f's_addc_u32 {s(d + 1)}, {s(lo + 1)}, 0')
    A(f's_and_b32 {s(d + 1)}, {s(d + 1)}, 0xffff')
    A(f's_sub_u32 {s(d + 2)}, {total}, {s(sT0)}')
    A(f's_mov_b32 {s(d + 3)}, 0x20000')


def role_s1(g):
    A = g.A
    SK, SV, SX = s(52, 4), s(56, 4), s(60, 4)
    sTMP, sW1K, sSEG, sXOFF, sKVO, sFLG, sBUF, sNB = 68, 69, 70, 71, 72, 73, 74, 75
    vSRC, vTR, vTMP, vXS, vKA, vVA, vFL = 1, 2, 3, 4, 5, 6, 7
    vX = 8
    vXC = 12
    XF = 16
    AK, AV = 32, 48
    PK = 64

    def wk(ks):
        return a, 4 * ks

    def wv(ks):
        return (a, 144 + 4 * ks) if ks < 28 else (v, 192 + 4 * (ks - 28))

    head_srd(g, 52, 14, 256, WBYTES)
    head_srd(g, 56, 16, 256, WBYTES)
    g.srd(60, 8, 9, 2048 * 1152)
    A(f's_lshl_b32 {s(sW1K)}, {s(sWAVE)}, 10')
    setup_w32(g, vSRC, vTR, 16)
    r0 = dma_blocks32(g, SK, vSRC, range(0, 5), REGA, sTMP)
    r1 = dma_blocks32(g, SK, vSRC, range(5, 9), REGB, sTMP)
    A('v_lshrrev_b32 v16, 3, v0')
    A(f's_lshl_b32 {s(sT0)}, {s(sWAVE)}, 3')
    A(f'v_add_u32 v16, {s(sT0)}, v16')
    A('v_bfe_u32 v17, v16, 1, 3')
    A('v_and_b32 v18, 7, v0')
    A('v_xor_b32 v17, v17, v18')
    A('v_mul_u32_u24 v16, 1152, v16')
    A(f'v_lshl_add_u32 {v(vXS)}, v17, 4, v16')
    A('v_and_b32 v16, 31, v0')
    A('v_lshrrev_b32 v17, 5, v0')
    A('v_bfe_u32 v18, v16, 1, 3')
    A('v_lshlrev_b32 v19, 7, v16')
    for q in range(4):
        A(f'v_add_u32 v20, {2 * q}, v17')
        A('v_xor_b32 v20, v20, v18')
        A(f'v_lshl_add_u32 {v(vX + q)}, v20, 4, v19')
    A('v_bfe_u32 v20, v16, 3, 1')
    A('v_lshlrev_b32 v20, 10, v20')
    A('v_lshl_add_u32 v20, v17, 8, v20')
    A('v_lshrrev_b32 v21, 4, v16')
    A('v_lshl_add_u32 v20, v21, 7, v20')
    A('v_and_b32 v22, 7, v16')
    A('v_lshl_add_u32 v20, v22, 4, v20')
    A(f's_lshl_b32 {s(sT0)}, {s(sWAVE)}, 11')
    A(f'v_add_u32 {v(vKA)}, {s(sT0)}, v20')
    A('v_lshlrev_b32 v20, 12, v21')
    A('v_lshl_add_u32 v20, v17, 8, v20')
    A('v_and_b32 v22, 15, v16')
    A('v_lshl_add_u32 v20, v22, 4, v20')
    A(f's_add_u32 {s(sT0)}, {s(sW1K)}, 8192')
    A(f'v_add_u32 {v(vVA)}, {s(sT0)}, v20')
    A(f's_lshl_b32 {s(sT0)}, {s(sBR)}, 11')
    A(f's_add_u32 {s(sT0)}, {s(sT0)}, {s(sIDX)}')
    A(f's_lshl_b32 {s(sKVO)}, {s(sT0)}, 14')
    A(f's_add_u32 {s(sKVO)}, {s(sKVO)}, {KV}')
    A(f's_lshl_b32 {s(sT0)}, {s(sBR)}, 5')
    A(f's_add_u32 {s(sT0)}, {s(sT0)}, {s(sIDX)}')
    A(f's_lshl_b32 {s(sFLG)}, {s(sT0)}, 7')
    A(f's_add_u32 {s(sFLG)}, {s(sFLG)}, {F1}')
    A(f's_cmp_eq_u32 {s(sWAVE)}, 0')
    A(f's_cselect_b32 {s(sFLG)}, {s(sFLG)}, {OOB}')

    def xdma(sbuf_expr_reg, soff):
        for cb in range(9):
            A(f's_add_u32 m0, {s(sbuf_expr_reg)}, {cb * (4096 - 128)}')
            A('s_nop 0')
            A(f'buffer_load_dwordx4 {v(vXS)}, {SX}, {s(soff)} offen offset:{cb * 128} lds')

    def process(nleft, blocks, region, dst):
        A(f's_waitcnt vmcnt({nleft})')
        A('s_barrier')
        tr_blocks32(g, vTR, vTMP, blocks, region, dst)
        A('s_waitcnt lgkmcnt(0)')
        A('s_barrier')

    process(r1, range(0, 5), REGA, wk)
    r2 = dma_blocks32(g, SV, vSRC, range(0, 5), REGA, sTMP)
    process(r2, range(5, 9), REGB, wk)
    r3 = dma_blocks32(g, SV, vSRC, range(5, 9), REGB, sTMP)
    process(r3, range(0, 5), REGA, wv)
    for b in range(2):
        A(f's_add_u32 {s(sNB)}, {s(sW1K)}, {b * 36864}')
        A(f's_mov_b32 {s(sXOFF)}, {b * 36864}')
        xdma(sNB, sXOFF)
    process(18, range(5, 9), REGB, wv)
    A(f's_add_u32 {s(sNB)}, {s(sW1K)}, {2 * 36864}')
    A(f's_mov_b32 {s(sXOFF)}, {2 * 36864}')
    xdma(sNB, sXOFF)
    A('v_lshlrev_b32 v16, 2, v0')
    g.wait_d(17, 16)
    A(f's_mov_b32 {s(sSEG)}, 0')
    A(f's_mov_b32 {s(sBUF)}, 0')
    A(f's_mov_b32 {s(sXOFF)}, {3 * 36864}')
    A.label('S1_LOOP')
    A('s_waitcnt vmcnt(14)')
    A('s_barrier')
    A(f's_max_u32 {s(sT0)}, {s(sSEG)}, 1')
    A(f's_sub_u32 {s(sT0)}, {s(sT0)}, 1')
    A(f'v_mov_b32 {v(vFL)}, {s(sT0)}')
    for q in range(4):
        A(f'v_add_u32 {v(vXC + q)}, {s(sBUF)}, {v(vX + q)}')
    A('s_mov_b64 exec, 1')
    A(f'buffer_store_dword {v(vFL)}, off, {WS}, {s(sFLG)} sc1')
    A('s_mov_b64 exec, -1')

    def rd(ks):
        A(f'ds_read_b128 {v(XF + 4 * (ks & 3), 4)}, {v(vXC + (ks & 3))} offset:{(ks >> 2) * 4096}')
    for ks in range(3):
        rd(ks)
    A(f's_sub_u32 {s(sNB)}, {s(sBUF)}, 36864')
    A(f's_cmp_eq_u32 {s(sBUF)}, 0')
    A(f's_cselect_b32 {s(sNB)}, {3 * 36864}, {s(sNB)}')
    A(f's_add_u32 {s(sNB)}, {s(sNB)}, {s(sW1K)}')
    for ks in range(36):
        if ks + 3 < 36:
            rd(ks + 3)
        A(f's_waitcnt lgkmcnt({min(3, 35 - ks)})')
        x = v(XF + 4 * (ks & 3), 4)
        f, r = wk(ks)
        A(f'v_mfma_f32_32x32x16_bf16 {v(AK, 16)}, {f(r, 4)}, {x}, {v(AK, 16) if ks else 0}')
        if 1 <= ks <= 9:
            cb = ks - 1
            A(f's_add_u32 m0, {s(sNB)}, {cb * (4096 - 128)}')
        f, r = wv(ks)
        A(f'v_mfma_f32_32x32x16_bf16 {v(AV, 16)}, {x}, {f(r, 4)}, {v(AV, 16) if ks else 0}')
        if 1 <= ks <= 9:
            A(f'buffer_load_dwordx4 {v(vXS)}, {SX}, {s(sXOFF)} offen offset:{cb * 128} lds')
    A(f's_add_u32 {s(sXOFF)}, {s(sXOFF)}, 36864')
    A(f's_add_u32 {s(sBUF)}, {s(sBUF)}, 36864')
    A(f's_cmp_eq_u32 {s(sBUF)}, {4 * 36864}')
    A(f's_cselect_b32 {s(sBUF)}, 0, {s(sBUF)}')
    for i in range(8):
        A(f'v_cvt_pk_bf16_f32 {v(PK + i)}, {v(AK + 2 * i)}, {v(AK + 2 * i + 1)}')
    for c in range(2):
        A(f'buffer_store_dwordx4 {v(PK + 4 * c, 4)}, {v(vKA)}, {WS}, {s(sKVO)} offen offset:{c * 512} sc1')
    for i in range(8):
        A(f'v_cvt_pk_bf16_f32 {v(PK + 8 + i)}, {v(AV + 2 * i)}, {v(AV + 2 * i + 1)}')
    for c in range(2):
        A(f'buffer_store_dwordx4 {v(PK + 8 + 4 * c, 4)}, {v(vVA)}, {WS}, {s(sKVO)} offen offset:{c * 512} sc1')
    A(f's_add_u32 {s(sKVO)}, {s(sKVO)}, {32 * 16384}')
    A(f's_add_u32 {s(sSEG)}, {s(sSEG)}, 1')
    A(f's_cmp_lt_u32 {s(sSEG)}, 64')
    A('s_cbranch_scc1 S1_LOOP')
    A('s_waitcnt vmcnt(0)')
    A('s_barrier')
    A(f'v_mov_b32 {v(vFL)}, 64')
    A('s_mov_b64 exec, 1')
    A(f'buffer_store_dword {v(vFL)}, off, {WS}, {s(sFLG)} sc1')
    A('s_branch END')
```

```python
from gen import *
from role_s1 import head_srd, setup_w32, dma_blocks32, tr_blocks32

CEXP = 0x3e0293ee
NEGRAW = 0xd028965f


def role_s2(g):
    A = g.A
    SQ, SX = s(52, 4), s(60, 4)
    sTMP, sW1K, sSEG, sXOFF, sKVO, sF1, sF2, sF3, sKM, sOO, sHAVE, sC, sCNT = range(68, 81)
    vSRC, vTR, vTMP = 1, 2, 3
    vW = 1
    vXA, vKA, vVA, vL16, vMA, vKW, vKR, vTH, vNG = 4, 5, 6, 7, 8, 9, 10, 11, 12
    WB = 16
    T = 48
    ACC = 64
    QF = 128
    SX_ = 160
    KMF = 176
    SM = 208
    VM = 224
    KT = 232
    PX, PM = 240, 248
    XF, KX, VX = 0, 144, 176

    head_srd(g, 52, 12, 256, WBYTES)
    g.srd(60, 8, 9, 2048 * 1152)
    A(f's_lshl_b32 {s(sW1K)}, {s(sWAVE)}, 10')
    setup_w32(g, vSRC, vTR, 16)
    dma_blocks32(g, SQ, vSRC, range(9), 0, sTMP)
    A('v_and_b32 v16, 31, v0')
    A('v_lshrrev_b32 v17, 5, v0')
    A(f'v_lshlrev_b32 {v(vL16)}, 4, v0')
    A('v_mul_u32_u24 v18, 1152, v16')
    A(f'v_lshl_add_u32 {v(vXA)}, v17, 4, v18')
    A('v_bfe_u32 v20, v16, 3, 1')
    A('v_lshlrev_b32 v20, 10, v20')
    A('v_lshl_add_u32 v20, v17, 8, v20')
    A('v_lshrrev_b32 v21, 4, v16')
    A('v_lshl_add_u32 v20, v21, 7, v20')
    A('v_and_b32 v22, 7, v16')
    A(f'v_lshl_add_u32 {v(vKA)}, v22, 4, v20')
    A('v_lshlrev_b32 v20, 12, v21')
    A('v_lshl_add_u32 v20, v17, 8, v20')
    A('v_and_b32 v22, 15, v16')
    A('v_lshl_add_u32 v20, v22, 4, v20')
    A(f'v_add_u32 {v(vVA)}, 8192, v20')
    A('v_lshl_add_u32 v20, v21, 5, v22')
    A('v_lshl_add_u32 v20, v17, 4, v20')
    A('v_lshlrev_b32 v20, 4, v20')
    A(f'v_add_u32 {v(vMA)}, 8, v20')
    A(f's_lshl_b32 {s(sT0)}, {s(sWAVE)}, 12')
    A(f's_add_u32 {s(sT0)}, {s(sT0)}, 147456')
    A('v_and_b32 v20, 15, v0')
    A('v_lshl_add_u32 v20, v17, 4, v20')
    A('v_lshlrev_b32 v20, 4, v20')
    A('v_bfe_u32 v23, v0, 4, 1')
    A('v_lshl_add_u32 v20, v23, 3, v20')
    A(f'v_add_u32 {v(vKW)}, {s(sT0)}, v20')
    A('v_bfe_u32 v20, v0, 2, 2')
    A('v_lshl_add_u32 v20, v17, 2, v20')
    A('v_lshlrev_b32 v20, 4, v20')
    A('v_and_b32 v23, 1, v0')
    A('v_lshl_add_u32 v20, v23, 3, v20')
    A(f'v_add_u32 {v(vKR)}, {s(sT0)}, v20')
    A('v_lshlrev_b32 v20, 2, v17')
    A(f'v_sub_u32 {v(vTH)}, v16, v20')
    A(f'v_mov_b32 {v(vNG)}, {NEGRAW}')
    A(f's_lshl_b32 {s(sT0)}, {s(sBR)}, 11')
    A(f's_add_u32 {s(sT0)}, {s(sT0)}, {s(sIDX)}')
    A(f's_lshl_b32 {s(sT1)}, {s(sWAVE)}, 5')
    A(f's_add_u32 {s(sT0)}, {s(sT0)}, {s(sT1)}')
    A(f's_lshl_b32 {s(sKVO)}, {s(sT0)}, 14')
    A(f's_add_u32 {s(sKVO)}, {s(sKVO)}, {KV}')
    A(f's_lshl_b32 {s(sKM)}, {s(sT0)}, 12')
    A(f's_add_u32 {s(sKM)}, {s(sKM)}, {KMVM}')
    A(f's_lshl_b32 {s(sOO)}, {s(sT0)}, 13')
    A(f's_add_u32 {s(sOO)}, {s(sOO)}, {OB}')
    A(f's_lshl_b32 {s(sT0)}, {s(sBR)}, 5')
    A(f's_add_u32 {s(sT0)}, {s(sT0)}, {s(sIDX)}')
    A(f's_lshl_b32 {s(sT0)}, {s(sT0)}, 7')
    A(f's_add_u32 {s(sF1)}, {s(sT0)}, {F1}')
    A(f's_add_u32 {s(sF2)}, {s(sT0)}, {F2}')
    A(f's_lshl_b32 {s(sT1)}, {s(sWAVE)}, 2')
    A(f's_add_u32 {s(sF3)}, {s(sT0)}, {s(sT1)}')
    A(f's_add_u32 {s(sF3)}, {s(sF3)}, {F3}')
    A(f's_mul_i32 {s(sXOFF)}, {s(sWAVE)}, 36864')
    A(f's_mov_b32 {s(sSEG)}, {s(sWAVE)}')
    A(f's_mov_b32 {s(sHAVE)}, 0')
    A(f's_mov_b32 {s(sCNT)}, 0')
    A(f's_mov_b32 {s(sC)}, {CEXP}')
    A('s_waitcnt vmcnt(0)')
    A('s_barrier')
    tr_blocks32(g, vTR, vTMP, range(9), 0, lambda ks: (v, 64 + 4 * ks))
    A('s_waitcnt lgkmcnt(0)')
    A('s_barrier')
    A(f'v_mov_b32 {v(vW)}, {v(vL16)}')
    A(f'v_add_u32 {v(vW + 1)}, 0x10000, {v(vL16)}')
    A(f'v_add_u32 {v(vW + 2)}, 0x20000, {v(vL16)}')
    for j in range(3):
        A(f'v_add_u32 {v(16 + j)}, {s(sW1K)}, {v(vW + j)}')
    for ks in range(36):
        A(f'ds_write_b128 {v(16 + (ks >> 4))}, {v(64 + 4 * ks, 4)} offset:{(ks & 15) * 4096}')

    def xload():
        for ks in range(36):
            A(f'buffer_load_dwordx4 {a(XF + 4 * ks, 4)}, {v(vXA)}, {SX}, {s(sXOFF)} offen offset:{ks * 32}')
        A(f's_add_u32 {s(sXOFF)}, {s(sXOFF)}, {4 * 36864}')

    xload()
    A('v_lshlrev_b32 v20, 2, v0')
    g.wait_d(21, 20)
    A('s_waitcnt lgkmcnt(0)')
    A('s_barrier')
    A.label('S2_LOOP')
    A(f's_cmp_gt_u32 {s(sHAVE)}, {s(sSEG)}')
    A('s_cbranch_scc1 S2_KVOK')
    A.label('S2_KVPOLL')
    A(f'buffer_load_dword {v(T)}, off, {WS}, {s(sF1)} sc1')
    A('s_waitcnt vmcnt(0)')
    A(f'v_readfirstlane_b32 {s(sHAVE)}, {v(T)}')
    A(f's_cmp_gt_u32 {s(sHAVE)}, {s(sSEG)}')
    A('s_cbranch_scc1 S2_KVOK')
    A('s_sleep 4')
    g.spin_fail(7)
    A('s_branch S2_KVPOLL')
    A.label('S2_KVOK')
    A(f's_add_u32 {s(sT0)}, {s(sKVO)}, 4096')
    for i in range(8):
        so = s(sKVO) if i < 4 else s(sT0)
        A(f'buffer_load_dwordx4 {a(KX + 4 * i, 4)}, {v(vKA)}, {WS}, {so} offen offset:{((i >> 1) & 1) * 2048 + (i & 1) * 512} sc1')
    for i in range(8):
        A(f'buffer_load_dwordx4 {a(VX + 4 * i, 4)}, {v(vVA)}, {WS}, {s(sKVO)} offen offset:{(i >> 1) * 1024 + (i & 1) * 512} sc1')
    A(f's_add_u32 {s(sKVO)}, {s(sKVO)}, {4 * 32 * 16384}')

    def rd(n):
        ks, t = n >> 2, n & 3
        A(f'ds_read_b128 {v(WB + 4 * (n & 7), 4)}, {v(vW + (ks >> 4))} offset:{(ks & 15) * 4096 + t * 1024}')
    for n in range(7):
        rd(n)
    A('s_waitcnt vmcnt(16)')
    for n in range(144):
        ks, t = n >> 2, n & 3
        if n + 7 < 144:
            rd(n + 7)
        A(f's_waitcnt lgkmcnt({min(7, 143 - n)})')
        acc = v(ACC + 16 * t, 16)
        A(f'v_mfma_f32_32x32x16_bf16 {acc}, {v(WB + 4 * (n & 7), 4)}, {a(XF + 4 * ks, 4)}, {acc if ks else 0}')
    xload()
    for i in range(32):
        A(f'v_cvt_pk_bf16_f32 {v(QF + i)}, {v(ACC + 2 * i)}, {v(ACC + 2 * i + 1)}')
    A('s_waitcnt vmcnt(36)')
    for i in range(8):
        A(f'v_mfma_f32_32x32x16_bf16 {v(SX_, 16)}, {a(KX + 4 * i, 4)}, {v(QF + 4 * i, 4)}, {v(SX_, 16) if i else 0}')
    for r in range(16):
        A(f'v_cmp_le_i32 vcc, {8 * (r >> 2) + (r & 3)}, {v(vTH)}')
        A(f'v_cndmask_b32 {v(SX_ + r)}, {v(vNG)}, {v(SX_ + r)}, vcc')
    MX, TT, LS = T + 4, T + 5, T + 6
    A(f'v_max3_f32 {v(MX)}, {v(SX_)}, {v(SX_ + 1)}, {v(SX_ + 2)}')
    for r in range(3, 15, 2):
        A(f'v_max3_f32 {v(MX)}, {v(MX)}, {v(SX_ + r)}, {v(SX_ + r + 1)}')
    A(f'v_max_f32 {v(MX)}, {v(MX)}, {v(SX_ + 15)}')
    A.label('S2_KMPOLL')
    A(f'buffer_load_dwordx4 {v(T, 4)}, off, {WS}, {s(sF2)} sc1')
    A('s_waitcnt vmcnt(0)')
    A(f'v_min3_u32 {v(T)}, {v(T)}, {v(T + 1)}, {v(T + 2)}')
    A(f'v_min_u32 {v(T)}, {v(T)}, {v(T + 3)}')
    A(f'v_readfirstlane_b32 {s(sT0)}, {v(T)}')
    A(f's_cmp_gt_u32 {s(sT0)}, {s(sSEG)}')
    A('s_cbranch_scc1 S2_KMOK')
    A('s_sleep 2')
    g.spin_fail(8)
    A('s_branch S2_KMPOLL')
    A.label('S2_KMOK')
    for w in range(4):
        A(f'buffer_load_dwordx2 {v(KT + 2 * w, 2)}, {v(vL16)}, {WS}, {s(sKM)} offen offset:{w * 1024} sc1')
    for w in range(4):
        A(f'buffer_load_dwordx2 {v(VM + 2 * w, 2)}, {v(vMA)}, {WS}, {s(sKM)} offen offset:{w * 1024} sc1')
    A(f's_add_u32 {s(sKM)}, {s(sKM)}, {4 * 32 * 4096}')
    for w in range(4):
        A(f's_waitcnt vmcnt({7 - w})')
        A(f'ds_write_b64 {v(vKW)}, {v(KT + 2 * w, 2)} offset:{w * 512}')
    A('s_waitcnt lgkmcnt(0)')
    for i in range(8):
        for u in range(2):
            A(f'ds_read_b64_tr_b16 {v(KMF + 4 * i + 2 * u, 2)}, {v(vKR)} offset:{(16 * i + 8 * u) * 16}')
    for i in range(8):
        A(f's_waitcnt lgkmcnt({14 - 2 * i})')
        A(f'v_mfma_f32_32x32x16_bf16 {v(SM, 16)}, {v(KMF + 4 * i, 4)}, {v(QF + 4 * i, 4)}, {v(SM, 16) if i else 0}')
    A(f'v_max3_f32 {v(MX)}, {v(MX)}, {v(SM)}, {v(SM + 1)}')
    A(f'v_max3_f32 {v(MX)}, {v(MX)}, {v(SM + 2)}, {v(SM + 3)}')
    A(f'v_mov_b32 {v(TT)}, {v(MX)}')
    A(f'v_permlane32_swap_b32 {v(MX)}, {v(TT)}')
    A(f'v_max_f32 {v(MX)}, {v(MX)}, {v(TT)}')
    A(f'v_mul_f32 {v(MX)}, {s(sC)}, {v(MX)}')
    vals = [SX_ + r for r in range(16)] + [SM + r for r in range(4)]
    for r in vals:
        A(f'v_fma_f32 {v(r)}, {v(r)}, {s(sC)}, -{v(MX)}')
    for r in vals:
        A(f'v_exp_f32 {v(r)}, {v(r)}')
    for i in range(8):
        A(f'v_cvt_pk_bf16_f32 {v(PX + i)}, {v(SX_ + 2 * i)}, {v(SX_ + 2 * i + 1)}')
    for i in range(2):
        A(f'v_cvt_pk_bf16_f32 {v(PM + i)}, {v(SM + 2 * i)}, {v(SM + 2 * i + 1)}')
    A('s_waitcnt vmcnt(0)')
    sums = [(LS, vals[0], vals[1])] + [(LS, LS, r) for r in vals[2:]]
    si = 0
    for t in range(4):
        acc = v(ACC + 16 * t, 16)
        for ins in (f'v_mfma_f32_32x32x16_bf16 {acc}, {a(VX + 8 * t, 4)}, {v(PX, 4)}, 0',
                    f'v_mfma_f32_32x32x16_bf16 {acc}, {a(VX + 8 * t + 4, 4)}, {v(PX + 4, 4)}, {acc}',
                    f'v_mfma_f32_32x32x8_bf16 {acc}, {v(VM + 2 * t, 2)}, {v(PM, 2)}, {acc}'):
            A(ins)
            for _ in range(4):
                if si < len(sums):
                    d, x, y = sums[si]
                    A(f'v_add_f32 {v(d)}, {v(x)}, {v(y)}')
                    si += 1
    A(f'v_mov_b32 {v(TT)}, {v(LS)}')
    A(f'v_permlane32_swap_b32 {v(LS)}, {v(TT)}')
    A(f'v_add_f32 {v(LS)}, {v(LS)}, {v(TT)}')
    A(f'v_rcp_f32 {v(LS)}, {v(LS)}')
    A(f's_add_u32 {s(sT0)}, {s(sOO)}, 4096')
    for i in range(8):
        for j in range(4):
            r = ACC + 8 * i + 2 * j
            A(f'v_pk_mul_f32 {v(r, 2)}, {v(r, 2)}, {v(LS, 2)} op_sel_hi:[1,0]')
        for j in range(4):
            r = ACC + 8 * i + 2 * j
            A(f'v_cvt_pk_bf16_f32 {v(QF + 4 * i + j)}, {v(r)}, {v(r + 1)}')
        so = s(sOO) if i < 4 else s(sT0)
        A(f'buffer_store_dwordx4 {v(QF + 4 * i, 4)}, {v(vL16)}, {WS}, {so} offen offset:{(i & 3) * 1024} sc1')
    A(f's_add_u32 {s(sOO)}, {s(sOO)}, {4 * 32 * 8192}')
    A(f's_add_u32 {s(sCNT)}, {s(sCNT)}, 1')
    A(f'v_mov_b32 {v(T)}, {s(sCNT)}')
    A('s_waitcnt vmcnt(0)')
    A('s_mov_b64 exec, 1')
    A(f'buffer_store_dword {v(T)}, off, {WS}, {s(sF3)} sc1')
    A('s_mov_b64 exec, -1')
    A(f's_add_u32 {s(sSEG)}, {s(sSEG)}, 4')
    A(f's_cmp_lt_u32 {s(sSEG)}, 64')
    A('s_cbranch_scc1 S2_LOOP')
    A('s_branch END')
```

```python
from gen import *


def role_s3(g):
    A = g.A
    SO = s(52, 4)
    sTMP, sWB, sKAP, sNU, sSEG, sOO, sF3, sF4, sP3, sPRE, sRB, sNEED, sFO = range(68, 81)
    vP = 1
    vTR, vL16, vRW, vRR, vFA, vF = 4, 5, 6, 7, 8, 9
    ACC = 16
    OB0, OB1 = 64, 128
    RT = 192

    g.srd(52, 18, 19, WBYTES)
    A(f's_mul_i32 {s(sKAP)}, {s(sIDX)}, 43')
    A(f's_lshr_b32 {s(sKAP)}, {s(sKAP)}, 8')
    A(f's_mul_i32 {s(sT0)}, {s(sKAP)}, 6')
    A(f's_sub_u32 {s(sNU)}, {s(sIDX)}, {s(sT0)}')
    A(f's_mul_i32 {s(sWB)}, {s(sWAVE)}, 24576')
    for j in range(3):
        A(f'v_add_u32 v16, {64 * j}, v0')
        A('v_mul_u32_u24 v17, 43691, v16')
        A('v_lshrrev_b32 v17, 19, v17')
        A('v_mul_u32_u24 v18, 12, v17')
        A('v_sub_u32 v18, v16, v18')
        A('v_mul_u32_u24 v17, 1152, v17')
        A(f'v_lshl_add_u32 {v(vP + j)}, v18, 4, v17')
    sHD = sSEG
    A(f's_lshl_b32 {s(sHD)}, {s(sKAP)}, 3')
    A(f's_lshl_b32 {s(sT0)}, {s(sWAVE)}, 1')
    A(f's_add_u32 {s(sHD)}, {s(sHD)}, {s(sT0)}')
    A(f's_mul_i32 {s(sRB)}, {s(sHD)}, 147456')
    A(f's_mul_i32 {s(sT0)}, {s(sNU)}, 192')
    A(f's_add_u32 {s(sRB)}, {s(sRB)}, {s(sT0)}')

    def dma(i):
        for grp in range(8):
            A(f's_add_u32 {s(sTMP)}, {s(sRB)}, {i * 147456 + grp * 16 * 1152}')
            for j in range(3):
                A(f's_add_u32 m0, {s(sWB)}, {grp * 3072 + j * 1024}')
                A('s_nop 0')
                A(f'buffer_load_dwordx4 {v(vP + j)}, {SO}, {s(sTMP)} offen{g.o.wmod} lds')
    dma(0)
    A('v_lshrrev_b32 v16, 5, v0')
    A('v_bfe_u32 v17, v0, 2, 2')
    A('v_lshl_add_u32 v17, v16, 2, v17')
    A('v_mul_u32_u24 v17, 192, v17')
    A('v_bfe_u32 v18, v0, 4, 1')
    A('v_lshl_add_u32 v17, v18, 5, v17')
    A('v_and_b32 v18, 3, v0')
    A('v_lshl_add_u32 v17, v18, 3, v17')
    A(f'v_add_u32 {v(vTR)}, {s(sWB)}, v17')
    A(f'v_lshlrev_b32 {v(vL16)}, 4, v0')
    A(f's_mul_i32 {s(sT0)}, {s(sWAVE)}, 12288')
    A(f'v_add_u32 {v(vRW)}, {s(sT0)}, {v(vL16)}')
    A(f's_mul_i32 {s(sT0)}, {s(sWAVE)}, 3072')
    A(f'v_add_u32 {v(vRR)}, {s(sT0)}, {v(vL16)}')
    A('v_and_b32 v16, 1, v0')
    A(f'v_lshlrev_b32 {v(vFA)}, 7, v16')
    A(f's_lshl_b32 {s(sT0)}, {s(sBR)}, 11')
    A(f's_add_u32 {s(sT0)}, {s(sT0)}, {s(sHD)}')
    A(f's_lshl_b32 {s(sOO)}, {s(sT0)}, 13')
    A(f's_add_u32 {s(sOO)}, {s(sOO)}, {OB}')
    A(f's_lshl_b32 {s(sT0)}, {s(sBR)}, 5')
    A(f's_add_u32 {s(sT0)}, {s(sT0)}, {s(sHD)}')
    A(f's_lshl_b32 {s(sF3)}, {s(sT0)}, 7')
    A(f's_add_u32 {s(sF3)}, {s(sF3)}, {F3}')
    A(f's_mul_i32 {s(sT0)}, {s(sBR)}, 24')
    A(f's_add_u32 {s(sT0)}, {s(sT0)}, {s(sIDX)}')
    A(f's_lshl_b32 {s(sT0)}, {s(sT0)}, 2')
    A(f's_add_u32 {s(sT0)}, {s(sT0)}, {s(sWAVE)}')
    A(f's_lshl_b32 {s(sF4)}, {s(sT0)}, 2')
    A(f's_add_u32 {s(sF4)}, {s(sF4)}, {F4}')
    A(f's_lshl_b32 {s(sT0)}, {s(sBR)}, 2')
    A(f's_add_u32 {s(sT0)}, {s(sT0)}, {s(sKAP)}')
    A(f's_mul_i32 {s(sP3)}, {s(sT0)}, 73728')
    A(f's_mul_i32 {s(sT0)}, {s(sNU)}, 12288')
    A(f's_add_u32 {s(sP3)}, {s(sP3)}, {s(sT0)}')
    A(f's_mul_i32 {s(sT0)}, {s(sWAVE)}, 3072')
    A(f's_add_u32 {s(sP3)}, {s(sP3)}, {s(sT0)}')
    A(f's_add_u32 {s(sP3)}, {s(sP3)}, {P3}')

    def wreg(kstep, tau):
        return (kstep * 3 + tau) * 4

    def tr(i):
        A('s_waitcnt vmcnt(0)')
        for kk in range(8):
            for tau in range(3):
                for u in range(2):
                    A(f'ds_read_b64_tr_b16 {a(wreg(8 * i + kk, tau) + 2 * u, 2)}, {v(vTR)} offset:{(16 * kk + 8 * u) * 192 + 64 * tau}')
        A('s_waitcnt lgkmcnt(0)')
    tr(0)
    dma(1)
    tr(1)
    A('v_lshlrev_b32 v16, 2, v0')
    g.wait_d(17, 16)
    A('s_barrier')
    A(f's_mov_b32 {s(sSEG)}, 0')
    A(f's_mov_b32 {s(sRB)}, 0')

    def flag_addr(seg_plus):
        A(f's_add_u32 {s(sT0)}, {s(sSEG)}, {seg_plus}')
        A(f's_lshr_b32 {s(sNEED)}, {s(sT0)}, 2')
        A(f's_and_b32 {s(sT0)}, {s(sT0)}, 3')
        A(f's_lshl_b32 {s(sT0)}, {s(sT0)}, 2')
        A(f's_add_u32 {s(sFO)}, {s(sF3)}, {s(sT0)}')

    def oload(buf):
        for n in range(16):
            if n % 4 == 0:
                A(f's_add_u32 {s(sTMP)}, {s(sOO)}, {n * 1024}')
            A(f'buffer_load_dwordx4 {v(buf + 4 * n, 4)}, {v(vL16)}, {WS}, {s(sTMP)} offen offset:{(n % 4) * 1024} sc1')
        A(f's_add_u32 {s(sOO)}, {s(sOO)}, {32 * 8192}')

    def poll(lbl, code):
        A.label(lbl)
        A(f'buffer_load_dword {v(vF)}, {v(vFA)}, {WS}, {s(sFO)} offen sc1')
        A('s_waitcnt vmcnt(0)')
        A(f'v_cmp_ge_u32 vcc, {s(sNEED)}, {v(vF)}')
        A(f's_cbranch_vccz {lbl}_OK')
        A('s_sleep 2')
        g.spin_fail(code)
        A(f's_branch {lbl}')
        A.label(lbl + '_OK')

    def publish(delta):
        A(f's_add_u32 {s(sT0)}, {s(sSEG)}, {delta}')
        A(f'v_mov_b32 v10, {s(sT0)}')
        A('s_mov_b64 exec, 1')
        A(f'buffer_store_dword v10, off, {WS}, {s(sF4)} sc1')
        A('s_mov_b64 exec, -1')

    flag_addr(0)
    poll('S3_FIRST', 9)
    oload(OB0)
    for par, (cur, nxt) in enumerate(((OB0, OB1), (OB1, OB0))):
        L = f'S3_{par}'
        A.label(L)
        flag_addr(1)
        A(f'buffer_load_dword {v(vF)}, {v(vFA)}, {WS}, {s(sFO)} offen sc1')
        A('s_waitcnt vmcnt(0)')
        publish(0)
        A(f's_mov_b32 {s(sPRE)}, 0')
        A(f's_cmp_eq_u32 {s(sSEG)}, 63')
        A(f's_cbranch_scc1 {L}_NOPRE')
        A(f'v_cmp_ge_u32 vcc, {s(sNEED)}, {v(vF)}')
        A(f's_cbranch_vccnz {L}_NOPRE')
        oload(nxt)
        A(f's_mov_b32 {s(sPRE)}, 1')
        A.label(L + '_NOPRE')
        for k in range(16):
            for tau in range(3):
                acc = v(ACC + 16 * tau, 16)
                A(f'v_mfma_f32_32x32x16_bf16 {acc}, {a(wreg(k, tau), 4)}, {v(cur + 4 * k, 4)}, {acc if k else 0}')
        A(f'v_add_u32 v11, {par * 49152}, {v(vRW)}')
        A(f'v_add_u32 v12, {par * 49152}, {v(vRR)}')
        for q in range(12):
            A(f'ds_write_b128 v11, {v(ACC + 4 * q, 4)} offset:{q * 1024}')
        A('s_waitcnt lgkmcnt(0)')
        A('s_barrier')
        for q in range(3):
            for w in range(4):
                A(f'ds_read_b128 {v(RT + 16 * q + 4 * w, 4)}, v12 offset:{w * 12288 + q * 1024}')
        for q in range(3):
            b = RT + 16 * q
            A(f's_waitcnt lgkmcnt({8 - 4 * q})')
            A(f'v_pk_add_f32 {v(b, 2)}, {v(b, 2)}, {v(b + 4, 2)}')
            A(f'v_pk_add_f32 {v(b + 2, 2)}, {v(b + 2, 2)}, {v(b + 6, 2)}')
            A(f'v_pk_add_f32 {v(b + 8, 2)}, {v(b + 8, 2)}, {v(b + 12, 2)}')
            A(f'v_pk_add_f32 {v(b + 10, 2)}, {v(b + 10, 2)}, {v(b + 14, 2)}')
            A(f'v_pk_add_f32 {v(b, 2)}, {v(b, 2)}, {v(b + 8, 2)}')
            A(f'v_pk_add_f32 {v(b + 2, 2)}, {v(b + 2, 2)}, {v(b + 10, 2)}')
            A(f'buffer_store_dwordx4 {v(b, 4)}, {v(vL16)}, {WS}, {s(sP3)} offen offset:{q * 1024} sc1')
        A(f's_add_u32 {s(sP3)}, {s(sP3)}, {8 * 73728}')
        A(f's_cmp_eq_u32 {s(sPRE)}, 1')
        A(f's_cbranch_scc1 {L}_NEXT')
        A('s_waitcnt vmcnt(0)')
        publish(1)
        A(f's_cmp_eq_u32 {s(sSEG)}, 63')
        A('s_cbranch_scc1 END')
        poll(L + '_POLL', 10)
        oload(nxt)
        A.label(L + '_NEXT')
        A(f's_add_u32 {s(sSEG)}, {s(sSEG)}, 1')
    A('s_branch S3_0')


def role_r(g):
    A = g.A
    SX, SG, SOUT = s(52, 4), s(56, 4), s(60, 4)
    sI, sSEG, sNU, sTAU, sP3, sOUT, sGO, sTMP, sHI = range(68, 77)
    vXA, vGA, vFA, vL16, vOA, vGT, vG, vOM = range(1, 9)
    g.srd(52, 8, 9, 2048 * 1152)
    g.srd(56, 36, 37, 1152)
    g.srd(60, 38, 39, 2048 * 1152)
    A(f's_lshl_b32 {s(sI)}, {s(sBR)}, 3')
    A(f's_add_u32 {s(sI)}, {s(sI)}, {s(sIDX)}')
    A(f's_sub_u32 {s(sI)}, {s(sI)}, 24')
    A(f's_lshl_b32 {s(sI)}, {s(sI)}, 2')
    A(f's_add_u32 {s(sI)}, {s(sI)}, {s(sWAVE)}')
    A('v_and_b32 v16, 31, v0')
    A('v_lshrrev_b32 v17, 5, v0')
    A('v_mul_u32_u24 v18, 1152, v16')
    A(f'v_lshl_add_u32 {v(vXA)}, v17, 4, v18')
    A(f'v_lshlrev_b32 {v(vGA)}, 4, v17')
    A(f'v_lshlrev_b32 {v(vL16)}, 4, v0')
    A(f'v_lshlrev_b32 {v(vGT)}, 2, v16')
    A(f'v_mov_b32 {v(vOA)}, {v(vXA)}')
    A(f's_mov_b32 {s(sHI)}, 0xffff0000')
    A(f's_mul_i32 {s(sTMP)}, {s(sI)}, 36864')
    A('v_mov_b32 v20, 0')
    for half in range(2):
        for k in range(18):
            ks = half * 18 + k
            A(f'buffer_load_dwordx4 {v(32 + 4 * k, 4)}, {v(vXA)}, {SX}, {s(sTMP)} offen offset:{ks * 32}')
            A(f'buffer_load_dwordx4 {v(112 + 4 * k, 4)}, {v(vGA)}, {SG}, 0 offen offset:{ks * 32}')
        A('s_waitcnt vmcnt(0)')
        for r in range(72):
            A(f'v_dot2c_f32_bf16 v20, {v(32 + r)}, {v(112 + r)}')
    A('s_nop 3')
    A('v_mov_b32 v21, v20')
    A('v_permlane32_swap_b32 v20, v21')
    A('v_add_f32 v20, v20, v21')
    A('v_cvt_pk_bf16_f32 v20, v20, v20')
    A('v_lshlrev_b32 v20, 16, v20')
    A('v_mul_f32 v20, 0xbfb8aa3b, v20')
    A('v_exp_f32 v20, v20')
    A('v_add_f32 v20, 1.0, v20')
    A('v_rcp_f32 v20, v20')
    A('v_cvt_pk_bf16_f32 v20, v20, v20')
    A('v_lshlrev_b32 v20, 16, v20')
    A('v_lshlrev_b32 v22, 2, v0')
    g.wait_d(23, 22)
    A(f's_lshl_b32 {s(sTMP)}, {s(sI)}, 7')
    A(f's_add_u32 {s(sTMP)}, {s(sTMP)}, {GATE}')
    A(f'buffer_store_dword v20, {v(vGT)}, {WS}, {s(sTMP)} offen sc1')
    A(f's_cmp_ge_u32 {s(sI)}, 54')
    A('s_cbranch_scc1 END')
    A(f's_mul_i32 {s(sSEG)}, {s(sI)}, 57')
    A(f's_lshr_b32 {s(sSEG)}, {s(sSEG)}, 10')
    A(f's_mul_i32 {s(sT0)}, {s(sSEG)}, 18')
    A(f's_sub_u32 {s(sT0)}, {s(sI)}, {s(sT0)}')
    A(f's_mul_i32 {s(sNU)}, {s(sT0)}, 43')
    A(f's_lshr_b32 {s(sNU)}, {s(sNU)}, 7')
    A(f's_mul_i32 {s(sP3)}, {s(sSEG)}, {8 * 73728}')
    A(f's_lshl_b32 {s(sT1)}, {s(sT0)}, 12')
    A(f's_add_u32 {s(sP3)}, {s(sP3)}, {s(sT1)}')
    A(f's_add_u32 {s(sP3)}, {s(sP3)}, {P3}')
    A(f's_mul_i32 {s(sOUT)}, {s(sSEG)}, 36864')
    A(f's_lshl_b32 {s(sT1)}, {s(sT0)}, 6')
    A(f's_add_u32 {s(sOUT)}, {s(sOUT)}, {s(sT1)}')
    A(f's_lshl_b32 {s(sGO)}, {s(sSEG)}, 7')
    A(f's_add_u32 {s(sGO)}, {s(sGO)}, {GATE}')
    A('v_lshrrev_b32 v18, 2, v16')
    A('v_mul_u32_u24 v18, 6, v18')
    A(f'v_add_u32 v18, {s(sNU)}, v18')
    A('v_and_b32 v19, 3, v16')
    A('v_lshl_add_u32 v18, v18, 2, v19')
    A('v_lshlrev_b32 v18, 2, v18')
    A(f'v_add_u32 {v(vFA)}, {F4}, v18')
    A.label('R_LOOP')
    A(f'buffer_load_dword {v(vG)}, {v(vGT)}, {WS}, {s(sGO)} offen sc1')
    A(f'buffer_load_dword v16, {v(vFA)}, {WS}, 0 offen sc1')
    A('s_waitcnt vmcnt(0)')
    A(f'v_cmp_ge_u32 vcc, {s(sSEG)}, v16')
    A(f'v_cmp_eq_u32 {s(96, 2)}, -1, {v(vG)}')
    A(f's_or_b64 vcc, vcc, {s(96, 2)}')
    A('s_cbranch_vccz R_GO')
    A('s_sleep 2')
    g.spin_fail(11)
    A('s_branch R_LOOP')
    A.label('R_GO')
    D = 32
    for kap in range(8):
        A(f's_add_u32 {s(sTMP)}, {s(sP3)}, {kap * 73728}')
        for q in range(4):
            A(f'buffer_load_dwordx4 {v(D + 16 * kap + 4 * q, 4)}, {v(vL16)}, {WS}, {s(sTMP)} offen offset:{q * 1024} sc1')
    A(f'v_sub_f32 {v(vOM)}, 1.0, {v(vG)}')
    A(f'v_cvt_pk_bf16_f32 {v(vOM)}, {v(vOM)}, {v(vOM)}')
    A(f'v_lshlrev_b32 {v(vOM)}, 16, {v(vOM)}')
    for b in range(2):
        base = D + 64 * b
        for kap in range(1, 4):
            A(f's_waitcnt vmcnt({28 - 16 * b - 4 * kap})')
            for i in range(8):
                A(f'v_pk_add_f32 {v(base + 2 * i, 2)}, {v(base + 2 * i, 2)}, {v(base + 16 * kap + 2 * i, 2)}')
        gate = vG if b == 0 else vOM
        for i in range(8):
            r = base + 2 * i
            A(f'v_cvt_pk_bf16_f32 v16, {v(r)}, {v(r + 1)}')
            A(f'v_lshlrev_b32 {v(r)}, 16, v16')
            A(f'v_and_b32 {v(r + 1)}, {s(sHI)}, v16')
            A(f'v_mul_f32 {v(r)}, {v(gate)}, {v(r)}')
            A(f'v_mul_f32 {v(r + 1)}, {v(gate)}, {v(r + 1)}')
            A(f'v_cvt_pk_bf16_f32 v16, {v(r)}, {v(r + 1)}')
            A(f'v_lshlrev_b32 {v(r)}, 16, v16')
            A(f'v_and_b32 {v(r + 1)}, {s(sHI)}, v16')
    for i in range(8):
        r = D + 2 * i
        A(f'v_pk_add_f32 {v(r, 2)}, {v(r, 2)}, {v(r + 64, 2)}')
        A(f'v_cvt_pk_bf16_f32 {v(20 + i)}, {v(r)}, {v(r + 1)}')
    for p in range(2):
        A(f'v_permlane32_swap_b32 {v(20 + 4 * p)}, {v(22 + 4 * p)}')
        A(f'v_permlane32_swap_b32 {v(21 + 4 * p)}, {v(23 + 4 * p)}')
        A(f'buffer_store_dwordx4 {v(20 + 4 * p, 4)}, {v(vOA)}, {SOUT}, {s(sOUT)} offen offset:{p * 32}')
    A(f's_add_u32 {s(sP3)}, {s(sP3)}, {3 * 8 * 73728}')
    A(f's_add_u32 {s(sOUT)}, {s(sOUT)}, {3 * 36864}')
    A(f's_add_u32 {s(sGO)}, {s(sGO)}, {3 * 128}')
    A(f's_add_u32 {s(sSEG)}, {s(sSEG)}, 3')
    A(f's_cmp_lt_u32 {s(sSEG)}, 64')
    A('s_cbranch_scc1 R_LOOP')
    A('s_branch END')
```

```python
import sys
import argparse
from asmlib import Asm

KNAME = 'gated_mix__memory_aug_recurrent_mem_tr__memory_aug_recurrent_mem_tr__prompt_kernel'

WS_BYTES = 0x10000000
F1 = 0x0000
F2 = 0x2000
F3 = 0x4000
F4 = 0x6000
POIS = 0x10000
MEMR = 0x10000
PART = 0x28000
GATE = 0x148000
TIMING = 0x200000
KV = 0x1000000
KMVM = 0x5000000
OB = 0x6000000
P3 = 0x8000000
OOB = 0x40000000
assert PART + 2 * 32 * 18432 <= GATE and GATE + 8192 <= POIS + 256 * 5120

WBYTES = 576 * 4096 * 2
SPIN = 1 << 18

D_OFF = 204
ERR_OFF = 208


def v(i, n=1):
    return f'v{i}' if n == 1 else f'v[{i}:{i + n - 1}]'


def a(i, n=1):
    return f'a{i}' if n == 1 else f'a[{i}:{i + n - 1}]'


def s(i, n=1):
    return f's{i}' if n == 1 else f's[{i}:{i + n - 1}]'


sWAVE, sGRP, sIDX, sBR, sMODE = 3, 4, 5, 6, 7
WS = s(44, 4)
DBG = s(48, 4)
sSPIN = 100
sT0, sT1 = 98, 99


class G:
    def __init__(self, opt):
        self.o = opt
        self.A = Asm()

    def srd(self, d, lo, hi, nbytes):
        A = self.A
        A(f's_mov_b32 {s(d)}, {s(lo)}')
        A(f's_and_b32 {s(d + 1)}, {s(hi)}, 0xffff')
        A(f's_mov_b32 {s(d + 2)}, {nbytes}')
        A(f's_mov_b32 {s(d + 3)}, 0x20000')

    def spin_fail(self, code):
        A = self.A
        A(f's_add_u32 {s(sSPIN)}, {s(sSPIN)}, 1')
        A(f's_cmp_lt_u32 {s(sSPIN)}, {SPIN}')
        ok = A.newlabel('spin_ok')
        A(f's_cbranch_scc1 {ok}')
        A(f's_mov_b32 {s(sT0)}, {code}')
        A('s_branch FAIL')
        A.label(ok)

    def wait_d(self, vt, vl4, sleep=True):
        A = self.A
        lp = A.newlabel('waitd')
        done = A.newlabel('waitd_done')
        A.label(lp)
        A(f'buffer_load_dword {v(vt)}, {v(vl4)}, {DBG}, 0 offen sc1')
        A('s_waitcnt vmcnt(0)')
        A(f'v_readlane_b32 {s(sT0)}, {v(vt)}, {D_OFF // 4}')
        A(f's_cmp_ge_u32 {s(sT0)}, 256')
        A(f's_cbranch_scc1 {done}')
        if sleep:
            A('s_sleep 8')
        self.spin_fail(1)
        A(f's_branch {lp}')
        A.label(done)

    CLANES = [0, 16, 32, 33, 34, 48, 49, 50]

    def prologue(self):
        A = self.A
        A('s_cmp_ge_u32 s2, 256')
        A('s_cbranch_scc1 END')
        A('s_load_dwordx16 s[8:23], s[0:1], 0')
        A('s_load_dwordx16 s[24:39], s[0:1], 64')
        A('s_load_dwordx4 s[40:43], s[0:1], 128')
        A(f's_getreg_b32 {s(sGRP)}, hwreg(HW_REG_XCC_ID, 0, 4)')
        A(f's_and_b32 {s(sGRP)}, {s(sGRP)}, 7')
        if self.o.fake_xcc:
            A(f's_mul_i32 {s(sGRP)}, s2, 37')
            A(f's_lshr_b32 {s(sGRP)}, {s(sGRP)}, 3')
            A(f's_and_b32 {s(sGRP)}, {s(sGRP)}, 7')
            A(f's_min_u32 {s(sGRP)}, {s(sGRP)}, 6')
        A('v_lshrrev_b32 v1, 6, v0')
        A(f's_mov_b32 {s(sSPIN)}, 0')
        A(f'v_readfirstlane_b32 {s(sWAVE)}, v1')
        A('v_lshlrev_b32 v2, 4, v0')
        A('v_and_b32 v0, 63, v0')
        A(f's_lshl_b32 {s(sT0)}, {s(sGRP)}, 6')
        A(f's_lshl_b32 {s(sT1)}, {s(sGRP)}, 2')
        A(f's_add_u32 s97, {s(sT1)}, 120')
        A(f's_cmp_ge_u32 {s(sGRP)}, 2')
        A(f's_cselect_b32 {s(sT0)}, s97, {s(sT0)}')
        A(f's_add_u32 s97, {s(sT1)}, 172')
        A(f's_cmp_ge_u32 {s(sGRP)}, 5')
        A(f's_cselect_b32 {s(sT0)}, s97, {s(sT0)}')
        A('v_mov_b32 v4, -1')
        A('v_mov_b32 v5, -1')
        A('v_mov_b32 v6, -1')
        A('v_mov_b32 v7, -1')
        A('v_mov_b32 v8, 0')
        A('v_mov_b32 v9, 0')
        A('v_mov_b32 v10, 0')
        A('v_mov_b32 v11, 0')
        A('v_mov_b32 v3, 1')
        A('s_waitcnt lgkmcnt(0)')
        self.srd(44, 42, 43, WS_BYTES)
        self.srd(48, 40, 41, 256)
        A(f's_mul_i32 {s(sT1)}, s2, 5120')
        A(f's_add_u32 {s(sT1)}, {s(sT1)}, {POIS}')
        nw0 = A.newlabel('notw0')
        A(f's_cmp_lg_u32 {s(sWAVE)}, 0')
        A(f's_cbranch_scc1 {nw0}')
        A('s_mov_b64 exec, 1')
        A(f'buffer_atomic_add v3, off, {DBG}, {s(sT0)} sc0')
        A('s_mov_b64 exec, 0xff')
        A('s_lshl_b32 s97, s2, 7')
        A(f'buffer_store_dwordx4 v[8:11], v2, {WS}, s97 offen sc1')
        A('s_mov_b64 exec, -1')
        A(f's_add_u32 s97, {s(sT1)}, 4096')
        A(f'buffer_store_dwordx4 v[4:7], v2, {WS}, s97 offen sc1')
        A.label(nw0)
        A(f'buffer_store_dwordx4 v[4:7], v2, {WS}, {s(sT1)} offen sc1')
        A('v_mov_b32 v12, 0')
        A('s_waitcnt vmcnt(0)')
        nw0 = A.newlabel('notw0b')
        A(f's_cmp_lg_u32 {s(sWAVE)}, 0')
        A(f's_cbranch_scc1 {nw0}')
        A('s_mov_b64 exec, 1')
        A('ds_write_b32 v12, v3')
        A('s_mov_b64 exec, -1')
        A('s_waitcnt lgkmcnt(0)')
        A.label(nw0)
        A('s_barrier')
        A('ds_read_b32 v3, v12')
        nw0 = A.newlabel('notw0c')
        A(f's_cmp_lg_u32 {s(sWAVE)}, 0')
        A(f's_cbranch_scc1 {nw0}')
        A('s_mov_b64 exec, 1')
        A('v_mov_b32 v4, 1')
        A(f'buffer_atomic_add v4, off, {DBG}, 0 offset:{D_OFF}')
        A('s_mov_b64 exec, -1')
        A.label(nw0)
        A('s_waitcnt lgkmcnt(0)')
        A(f'v_readfirstlane_b32 {s(sIDX)}, v3')
        A('s_barrier')
        ok = A.newlabel('role_ok')
        A(f's_cmp_lt_u32 {s(sIDX)}, 32')
        A(f's_cbranch_scc1 {ok}')
        A('v_lshlrev_b32 v1, 2, v0')
        self.wait_d(3, 1)
        for x in range(8):
            A(f'v_readlane_b32 {s(68 + x)}, v3, {self.CLANES[x]}')
        A(f's_sub_u32 {s(sIDX)}, {s(sIDX)}, 32')
        for x in range(7):
            A(f's_max_u32 {s(sT0)}, {s(68 + x)}, 32')
            A(f's_sub_u32 {s(sT0)}, {s(sT0)}, 32')
            A(f's_cmp_gt_u32 {s(sGRP)}, {x}')
            A(f's_cselect_b32 {s(sT0)}, {s(sT0)}, 0')
            A(f's_add_u32 {s(sIDX)}, {s(sIDX)}, {s(sT0)}')
        for x in range(8):
            nxt = A.newlabel('vac')
            A(f's_min_u32 {s(sT0)}, {s(68 + x)}, 32')
            A(f's_sub_u32 {s(sT1)}, 32, {s(sT0)}')
            A(f's_cmp_lt_u32 {s(sIDX)}, {s(sT1)}')
            A(f's_cbranch_scc0 {nxt}')
            A(f's_add_u32 {s(sIDX)}, {s(sIDX)}, {s(sT0)}')
            A(f's_mov_b32 {s(sGRP)}, {x}')
            A(f's_branch {ok}')
            A.label(nxt)
            A(f's_sub_u32 {s(sIDX)}, {s(sIDX)}, {s(sT1)}')
        A('s_branch END')
        A.label(ok)
        A(f's_and_b32 {s(sIDX)}, {s(sIDX)}, 31')
        A(f's_and_b32 {s(sBR)}, {s(sGRP)}, 1')
        A(f's_cmp_eq_u32 {s(sBR)}, 1')
        for k in range(5):
            A(f's_cselect_b64 {s(10 + 2 * k, 2)}, {s(24 + 2 * k, 2)}, {s(10 + 2 * k, 2)}')
        A(f's_lshr_b32 {s(sT0)}, {s(sGRP)}, 1')
        A(f's_cmp_eq_u32 {s(sT0)}, 0')
        A('s_cbranch_scc1 ROLE_CHAIN')
        A(f's_cmp_eq_u32 {s(sT0)}, 1')
        A('s_cbranch_scc1 ROLE_S1')
        A(f's_cmp_eq_u32 {s(sT0)}, 2')
        A('s_cbranch_scc1 ROLE_S2')
        A(f's_cmp_lt_u32 {s(sIDX)}, 24')
        A('s_cbranch_scc1 ROLE_S3')
        A('s_branch ROLE_R')

    def epilogue(self):
        A = self.A
        A.label('FAIL')
        A('s_mov_b64 exec, 1')
        A(f'v_mov_b32 v1, {s(sT0)}')
        A(f's_lshl_b32 {s(sT1)}, {s(sGRP)}, 2')
        A(f'buffer_store_dword v1, off, {DBG}, {s(sT1)} offset:{ERR_OFF} sc1')
        A.label('END')
        A('s_endpgm')

    def build(self):
        from role_chain import role_chain
        from role_s1 import role_s1
        from role_s2 import role_s2
        from role_s3 import role_s3, role_r
        A = self.A
        self.prologue()
        for name, fn in (('CHAIN', role_chain), ('S1', role_s1), ('S2', role_s2), ('S3', role_s3), ('R', role_r)):
            A('.p2align 6')
            A.label('ROLE_' + name)
            if name in self.o.roles:
                fn(self)
            else:
                A('s_branch END')
        self.epilogue()
        bad = A.check_branches()
        for b in bad:
            print('BRANCH HAZARD', b, file=sys.stderr)
        assert not bad
        hdr = open('cdna_kernels/' + KNAME[:-7] + '.s.ref').read().split('; Override launch')[0]
        out = hdr
        out += '; One persistent launch, one workgroup per CU; roles are taken at run time (see the generator notes below).\n'
        out += '; @launch grid=(256,1,1) block=(256,1,1) lds=163840\n'
        out += '.amdgcn_target "amdgcn-amd-amdhsa--gfx950"\n.text\n'
        out += f'.globl {KNAME}\n.p2align 8\n.type {KNAME},@function\n{KNAME}:\n'
        out += A.text()
        out += f'''.section .rodata,"a"
.p2align 6
.amdhsa_kernel {KNAME}
  .amdhsa_next_free_vgpr 512
  .amdhsa_next_free_sgpr 102
  .amdhsa_accum_offset 256
  .amdhsa_group_segment_fixed_size 0
  .amdhsa_kernarg_size 144
  .amdhsa_user_sgpr_count 2
  .amdhsa_user_sgpr_kernarg_segment_ptr 1
  .amdhsa_system_sgpr_workgroup_id_x 1
  .amdhsa_float_denorm_mode_32 3
.end_amdhsa_kernel
'''
        return out


if __name__ == '__main__':
    p = argparse.ArgumentParser()
    p.add_argument('-o', default='cdna_kernels/' + KNAME[:-7] + '.s')
    p.add_argument('--roles', default='CHAIN,S1,S2,S3,R')
    p.add_argument('--fake-xcc', action='store_true')
    p.add_argument('--timing', action='store_true')
    p.add_argument('--force-safe', action='store_true')
    p.add_argument('--wmod', default=' nt')
    opt = p.parse_args()
    opt.roles = opt.roles.split(',')
    import gen as _g
    g = _g.G(opt)
    txt = g.build()
    open(opt.o, 'w').write(txt)
    print('wrote', opt.o, len(txt), 'bytes; auto nop states:', g.A.padded)
```
